```python
import torch

def _softmax(x, axis=-1):
    return torch.softmax(x, dim=axis)
def _gelu(x):
    return torch.nn.functional.gelu(x, approximate="tanh")
def _silu(x):
    return torch.nn.functional.silu(x)
def _sigmoid(x):
    return torch.sigmoid(x)
def _layernorm(x, axis=-1, eps=1e-5):
    m = x.mean(dim=axis, keepdim=True)
    v = x.var(dim=axis, keepdim=True, unbiased=False)
    return (x - m) / torch.sqrt(v + eps)
def _scatter_add(tgt, idx, src, axis=0):
    return tgt.clone().index_add_(axis, idx, src)
def _segment_sum(src, seg, n):
    out = torch.zeros((n,) + src.shape[1:], dtype=src.dtype)
    return out.index_add_(0, seg, src)
def _pad(x, pw):
    flat = tuple(v for pair in reversed(pw) for v in pair)
    return torch.nn.functional.pad(x, flat)

kernel_name = 'sequential_preLN__linear_attn_block__mixer_s_mlp__prompt'

def setup_inputs():

    _w = (lambda a: (lambda t: t.to(torch.bfloat16) if t.is_floating_point() else t)(torch.as_tensor(a)))
    def _A_setup():
        B, S, D = 1, 2048, 640
        return {
            "x": _w((lambda *s: torch.randn(*s, dtype=torch.bfloat16) * 0.05)(B, S, D)),
            "wqkv": _w((lambda *s: torch.randn(*s, dtype=torch.bfloat16) * 0.05)(D, 3 * D)),
            "wo": _w((lambda *s: torch.randn(*s, dtype=torch.bfloat16) * 0.05)(D, D)),
        }
    _A_in = _A_setup()

    def _B_setup():
        B, S, D, F = 1, 2048, 640, 1728
        return {
            "x":  _w((lambda *s: torch.randn(*s, dtype=torch.bfloat16) * 0.05)(B, S, D)),
            "w1": _w((lambda *s: torch.randn(*s, dtype=torch.bfloat16) * 3.2)(D, D) * (D ** -0.5)),
            "w2": _w((lambda *s: torch.randn(*s, dtype=torch.bfloat16) * 3.2)(D, D) * (D ** -0.5)),
            "w3": _w((lambda *s: torch.randn(*s, dtype=torch.bfloat16) * 3.2)(D, F) * (D ** -0.5)),
            "w4": _w((lambda *s: torch.randn(*s, dtype=torch.bfloat16) * 3.2)(F, D) * (F ** -0.5)),
        }
    _B_in = _B_setup()

    return {
        "A_x": _A_in["x"],
        "A_wqkv": _A_in["wqkv"],
        "A_wo": _A_in["wo"],
        "B_x": _B_in["x"],
        "B_w1": _B_in["w1"],
        "B_w2": _B_in["w2"],
        "B_w3": _B_in["w3"],
        "B_w4": _B_in["w4"],
    }

def reference(A_x, A_wqkv, A_wo, B_x, B_w1, B_w2, B_w3, B_w4):
    def _A_ref(x, wqkv, wo):
        B, S, D = x.shape
        H = 32; Dh = D // H
        qkv = (lambda x, *d: x.permute(*d))((x @ wqkv).reshape(B, S, 3, H, Dh), 2, 0, 3, 1, 4)
        q, k, v = qkv[0], qkv[1], qkv[2]
        phi = lambda t: torch.where(t > 0, t + 1, torch.exp(t)) + 1e-6
        pq, pk = phi(q), phi(k)
        kv = torch.einsum("bhsd,bhse->bhde", pk, v)
        z = torch.einsum("bhsd->bhd", pk)
        num = torch.einsum("bhqd,bhde->bhqe", pq, kv)
        den = torch.einsum("bhqd,bhd->bhq", pq, z)[..., None] + 1e-6
        o = num / den
        return (lambda x, *d: x.permute(*d))(o, 0, 2, 1, 3).reshape(B, S, D) @ wo

    def _B_ref(x, w1, w2, w3, w4):
        B, S, D = x.shape
        h = _gelu(_layernorm(x, axis=-1) @ w1)
        c = D // 4
        g0 = _pad(h[:, :, 0*c:1*c], ((0, 0), (1, 0), (0, 0)))[:, :S, :]
        g1 = _pad(h[:, :, 1*c:2*c], ((0, 0), (0, 1), (0, 0)))[:, 1:, :]
        g2 = _pad(h[:, :, 2*c:3*c], ((0, 0), (2, 0), (0, 0)))[:, :S, :]
        g3 = _pad(h[:, :, 3*c:   ], ((0, 0), (0, 2), (0, 0)))[:, 2:, :]
        hs = torch.concatenate([g0, g1, g2, g3], axis=-1) @ w2
        x1 = x + hs
        h2 = _gelu(_layernorm(x1, axis=-1) @ w3) @ w4
        return x1 + h2

    x = A_x
    h = x + _A_ref(_layernorm(x, axis=-1), A_wqkv, A_wo)
    h2 = h + _B_ref(_layernorm(h, axis=-1), B_w1, B_w2, B_w3, B_w4)
    return h2
```

```python
import re

TRANS = ("v_exp_f32", "v_log_f32", "v_rcp_f32", "v_rsq_f32", "v_sqrt_f32", "v_sin_f32", "v_cos_f32")
_reg = re.compile(r"^-?\|?(?:abs\()?([vas])(?:(\d+)|\[(\d+):(\d+)\])\)?\|?$")


def regs_of(op):
    op = op.strip()
    if op in ("vcc", "exec", "m0", "scc"):
        return {op}
    if op in ("vcc_lo", "vcc_hi"):
        return {"vcc"}
    if op in ("exec_lo", "exec_hi"):
        return {"exec"}
    m = _reg.match(op)
    if not m:
        return set()
    k = m.group(1)
    if m.group(2) is not None:
        return {(k, int(m.group(2)))}
    return {(k, i) for i in range(int(m.group(3)), int(m.group(4)) + 1)}


class Ins:
    __slots__ = ("text", "mn", "cls", "w", "r", "mc", "ma", "slots", "dpp", "lds", "wide")


def parse(text):
    t = text.split(";")[0].strip()
    i = Ins()
    i.text = text
    sp = t.split(None, 1)
    mn = sp[0]
    i.mn = mn
    rest = sp[1] if len(sp) > 1 else ""
    parts = [p.strip() for p in rest.split(",")] if rest else []
    ops = []
    mods = ""
    for n, p in enumerate(parts):
        q = p.split(None, 1)
        if not q:
            continue
        ops.append(q[0])
        if len(q) > 1:
            mods += " " + q[1]
    i.w, i.r, i.mc, i.ma = set(), set(), set(), set()
    i.slots = 1
    i.dpp = "quad_perm" in t or "row_" in t
    i.lds = False
    i.wide = False
    R = [regs_of(o) for o in ops]
    allr = set().union(*R) if R else set()
    if mn == "s_nop":
        i.cls = "nop"
        i.slots = int(ops[0], 0) + 1
    elif mn.startswith("v_mfma"):
        i.cls = "mfma"
        i.w = R[0]
        i.ma = R[1] | R[2]
        i.mc = R[3]
        i.r = i.ma | i.mc
    elif mn.startswith("v_"):
        i.cls = "trans" if mn in TRANS else ("dot" if mn.startswith("v_dot") else "valu")
        i.w = set(R[0])
        i.r = set().union(*R[1:]) if len(R) > 1 else set()
        if mn.startswith("v_dot2c") or mn.startswith("v_fmac") or mn.startswith("v_pk_fmac"):
            i.r |= R[0]
        if "permlane" in mn:
            i.w = R[0] | R[1]
            i.r = R[0] | R[1]
    elif mn.startswith("buffer_") or mn.startswith("global_"):
        i.cls = "vmem"
        toks = t.split()
        if mn.startswith("buffer_load") and "lds" in toks:
            i.lds = True
            i.r = allr | {"m0"}
        elif mn.startswith("buffer_load"):
            i.w = R[0]
            i.r = set().union(*R[1:])
        elif mn.startswith("buffer_store") or mn.startswith("buffer_atomic"):
            i.r = allr
            if mn.startswith("buffer_atomic") and "sc0" in toks:
                i.w = R[0]
            if mn.endswith("x4") or mn.endswith("x3"):
                i.wide = True
                i.mc = R[0]
        else:
            i.r = allr
    elif mn.startswith("ds_"):
        i.cls = "ds"
        if mn.startswith("ds_read") or mn.startswith("ds_bpermute") or mn.startswith("ds_swizzle"):
            i.w = R[0]
            i.r = set().union(*R[1:])
        else:
            i.r = allr
    elif mn.startswith("s_"):
        i.cls = "salu"
        if mn.startswith("s_cmp") or mn.startswith("s_cbranch") or mn in ("s_branch", "s_waitcnt", "s_barrier", "s_endpgm", "s_sleep", "s_setprio"):
            i.r = allr
        else:
            i.w = set(R[0]) if R else set()
            i.r = set().union(*R[1:]) if len(R) > 1 else set()
            if "saveexec" in mn:
                i.w |= {"exec"}
    else:
        raise ValueError("unknown instruction: " + text)
    return i


def isS(x):
    return x == "vcc" or (isinstance(x, tuple) and x[0] == "s")


def need(p, c):
    n = 0
    pv = p.cls in ("valu", "trans", "dot")
    cv = c.cls in ("valu", "trans", "dot")
    if pv:
        if c.cls == "mfma" and (p.w & c.r):
            n = max(n, 2)
        sw = {x for x in p.w if isS(x)}
        if sw:
            if c.cls == "vmem" and (sw & c.r):
                n = max(n, 5)
            if cv and (sw & c.r):
                n = max(n, 4 if "lane" in c.mn else 2)
            if c.cls == "salu" and (sw & c.r):
                n = max(n, 2)
        if cv and (p.w & c.r):
            if c.mn.startswith("v_readfirstlane") or c.mn.startswith("v_readlane"):
                n = max(n, 1)
            if c.dpp or "permlane" in c.mn:
                n = max(n, 2)
            if p.cls == "trans" and c.cls != "trans":
                n = max(n, 1)
        if p.cls == "dot" and ((p.w & c.r) or (p.w & c.w)):
            if c.mn == p.mn:
                srcs = c.text.split(";")[0].split(",")[1:3]
                ab = set().union(*[regs_of(s.split()[0]) for s in srcs])
                if p.w & ab:
                    n = max(n, 3)
            else:
                n = max(n, 3)
    if p.cls == "mfma":
        if c.cls == "mfma":
            if p.w & c.ma:
                n = max(n, 8)
            if p.w & c.mc:
                n = max(n, 0 if p.w == c.mc else 6)
            elif p.w & c.w:
                n = max(n, 8)
        elif cv or c.cls in ("vmem", "ds"):
            if (p.w & c.r) or (p.w & c.w):
                n = max(n, 8)
            if cv and (p.mc & c.w):
                n = max(n, 3)
    if p.cls == "salu" and "m0" in p.w and c.lds:
        n = max(n, 1)
    if p.cls == "vmem" and p.wide and (p.mc & c.w):
        n = max(n, 2 if cv else 1)
    return n


class Asm:
    def __init__(self):
        self.lines = []
        self.hist = []
        self.nops = 0

    def raw(self, text):
        self.lines.append(text)

    def label(self, name, flush=True):
        if flush:
            self.fence()
        self.lines.append(name + ":")

    def fence(self):
        worst = 0
        d = 0
        for p in reversed(self.hist):
            if d >= 8:
                break
            if p.cls == "mfma":
                worst = max(worst, 8 - d)
            elif p.cls in ("valu", "trans", "dot"):
                worst = max(worst, 5 - d)
            elif p.cls in ("salu", "vmem"):
                worst = max(worst, 2 - d)
            d += p.slots
        if worst > 0:
            self._emit(parse(f"s_nop {worst-1}"))
            self.nops += worst

    def _emit(self, i):
        self.lines.append("    " + i.text)
        self.hist.append(i)
        if len(self.hist) > 24:
            self.hist.pop(0)

    def __call__(self, text):
        for line in text.split("\n"):
            line = line.strip()
            if not line:
                continue
            if line.startswith(";"):
                self.lines.append("    " + line)
                continue
            c = parse(line)
            d = 0
            pad = 0
            for p in reversed(self.hist):
                if d >= 8:
                    break
                nn = need(p, c)
                if nn > d:
                    pad = max(pad, nn - d)
                d += p.slots
            if pad:
                self._emit(parse(f"s_nop {pad-1}"))
                self.nops += pad
            self._emit(c)

    def text(self):
        return "\n".join(self.lines) + "\n"
```

```python
from asmb import Asm

NAME = "sequential_preLN__linear_attn_block__mixer_s_mlp__prompt"
S, D, F = 2048, 640, 1728
ACT = S * D * 2
PQ_OFF, H_OFF, HH_OFF, X1_OFF, G_OFF = 0, 0x280000, 0x500000, 0x780000, 0xA00000
G_BYTES = S * F * 2
KV_OFF = 0x1100000
KV_BYTES = 32 * 21 * 20 * 4
STH_OFF = 0x1120000
STX_OFF = 0x1140000
ST_BYTES = 32 * 8 * 64 * 8
FLAG_OFF = 0x1160000
FLAG_BYTES = 8192
LOG2E = 1.4426950408889634


def f32(x):
    import struct
    return "0x%08x" % struct.unpack("<I", struct.pack("<f", x))[0]


class VQ:
    def __init__(self, a):
        self.a = a
        self.q = []

    def issue(self, tag):
        self.q.append(tag)
        assert len(self.q) <= 63, "too many outstanding vmem ops"

    def wait(self, *tags):
        last = -1
        for i, t in enumerate(self.q):
            if t in tags:
                last = i
        if last < 0:
            return
        n = len(self.q) - 1 - last
        self.a(f"s_waitcnt vmcnt({n})")
        self.q = self.q[last + 1:]

    def wait_all(self):
        self.a("s_waitcnt vmcnt(0)")
        self.q = []


def srd(a, d, lo, hi, off, size):
    if off:
        a(f"s_add_u32 s{d}, s{lo}, {off}\ns_addc_u32 s{d+1}, s{hi}, 0")
    else:
        a(f"s_mov_b32 s{d}, s{lo}\ns_mov_b32 s{d+1}, s{hi}")
    a(f"s_mov_b32 s{d+2}, {size}\ns_mov_b32 s{d+3}, 0x00020000")


def kernel_head(a, label):
    a.raw(f".globl {label}\n.p2align 8\n.type {label},@function\n{label}:")


def kernel_desc(label, vgpr, accum, sgpr=102):
    return f""".p2align 6
.amdhsa_kernel {label}
  .amdhsa_next_free_vgpr {vgpr}
  .amdhsa_next_free_sgpr {sgpr}
  .amdhsa_accum_offset {accum}
  .amdhsa_group_segment_fixed_size 0
  .amdhsa_kernarg_size 88
  .amdhsa_user_sgpr_count 2
  .amdhsa_user_sgpr_kernarg_segment_ptr 1
  .amdhsa_system_sgpr_workgroup_id_x 1
.end_amdhsa_kernel
"""


def lanemask(fn):
    m = 0
    for l in range(64):
        if fn(l):
            m |= 1 << l
    return m


def set_exec(a, m):
    if m == (1 << 64) - 1:
        a("s_mov_b64 exec, -1")
    else:
        a(f"s_mov_b32 exec_lo, 0x{m & 0xffffffff:x}\ns_mov_b32 exec_hi, 0x{m >> 32:x}")
```

```python
from common import *

K1_LDS = 163840


def gen_k1(a, MAP=0):
    kernel_head(a, "k1_kernel")
    vq = VQ(a)
    AF = lambda mt, ks: 32 + (ks * 2 + mt) * 4
    ACC = lambda mt, t: 192 + (mt * 8 + t) * 4
    BF = lambda buf, t: (buf * 8 + t) * 4
    CS = lambda t: 64 + t * 4
    r4 = lambda k, b: f"{k}[{b}:{b+3}]"
    a("s_cmp_ge_u32 s2, 256\ns_cbranch_scc1 K1_END")
    a("s_load_dwordx4 s[4:7], s[0:1], 0")
    a("s_load_dwordx4 s[8:11], s[0:1], 72")
    a("s_and_b32 s46, s2, 7\ns_lshr_b32 s47, s2, 3")
    if MAP == 0:
        a("s_lshr_b32 s40, s47, 4\ns_lshl_b32 s46, s46, 1\ns_add_u32 s40, s40, s46\ns_and_b32 s41, s47, 15")
    else:
        a("s_lshr_b32 s40, s47, 3\ns_lshr_b32 s48, s46, 1\ns_lshl_b32 s48, s48, 2\ns_add_u32 s40, s40, s48")
        a("s_and_b32 s41, s47, 7\ns_and_b32 s48, s46, 1\ns_lshl_b32 s48, s48, 3\ns_add_u32 s41, s41, s48")
    a("v_lshrrev_b32 v1, 6, v0")
    a("v_and_b32 v2, 15, v0")
    a("v_bfe_u32 v3, v0, 4, 2")
    a("v_readfirstlane_b32 s42, v1")
    a("v_bfe_u32 v4, v0, 2, 2")
    a("v_and_b32 v5, 3, v0")
    a("s_and_b32 s48, s42, 1\ns_lshl_b32 s48, s48, 2")
    a("v_or_b32 v6, s48, v3")
    a("v_lshlrev_b32 v6, 1, v6")
    a("v_xor_b32 v6, v6, v2")
    a("v_lshlrev_b32 v7, 4, v6")
    a("v_mov_b32 v8, 1184\nv_mov_b32 v9, 1200\nv_mov_b32 v10, 0x40000000")
    a("v_cmp_lt_u32 vcc, 5, v6\nv_cndmask_b32 v8, 0, v8, vcc")
    a("v_cmp_lt_u32 vcc, 10, v6\nv_cndmask_b32 v9, 0, v9, vcc")
    a("v_add3_u32 v7, v7, v8, v9")
    a("v_cmp_eq_u32 vcc, 5, v6\nv_cndmask_b32 v7, v7, v10, vcc")
    a("s_lshl_b32 s48, s42, 3")
    a("v_add_u32 v8, s48, v3")
    a("v_mul_u32_u24 v8, 3840, v8")
    a("s_mul_i32 s48, s41, 80")
    a("v_add3_u32 v24, v7, v8, s48")
    a("v_add_u32 v25, 15360, v24")
    a("s_lshl_b32 s48, s40, 7\ns_lshl_b32 s49, s42, 5\ns_add_u32 s48, s48, s49")
    a("v_add_u32 v8, s48, v2")
    a("v_mul_u32_u24 v8, 1280, v8")
    a("v_lshl_add_u32 v26, v3, 4, v8")
    a("v_add_u32 v27, 20480, v26")
    a("v_and_b32 v8, 1, v3\nv_lshl_or_b32 v8, v8, 2, v4")
    a("v_lshl_add_u32 v9, v3, 3, v4")
    a("v_lshlrev_b32 v9, 8, v9")
    a("v_lshl_add_u32 v9, v5, 3, v9")
    for t in range(8):
        a(f"v_xor_b32 v10, {t}, v8\nv_lshl_add_u32 v{16+t}, v10, 5, v9")
    for i in range(4):
        a(f"v_mov_b32 v{28+i}, 0x3f803f80")
    for i in range(4):
        a(f"v_mov_b32 v{12+i}, 0")
    a("s_lshl_b32 s43, s42, 11")
    a("s_mov_b32 s44, 0")
    a("s_mov_b32 s45, 20480")
    a("s_waitcnt lgkmcnt(0)")
    srd(a, 12, 4, 5, 0, ACT)
    srd(a, 16, 6, 7, 0, 640 * 3840)
    srd(a, 28, 8, 9, 0, 256)
    srd(a, 32, 10, 11, FLAG_OFF, FLAG_BYTES)
    a("s_cmp_lg_u32 s42, 0\ns_cbranch_scc1 K1_NOTICKET")
    a("s_lshl_b32 s48, s41, 2\nv_mov_b32 v8, s48\nv_mov_b32 v11, 1")
    a("s_mov_b64 exec, 1")
    a("buffer_atomic_add v11, v8, s[28:31], 0 offen sc0")
    a("s_mov_b64 exec, 31")
    a("s_lshl_b32 s48, s2, 2\nv_lshl_add_u32 v8, v0, 10, s48\nv_mov_b32 v9, 0")
    a("buffer_store_dword v9, v8, s[32:35], 0 offen")
    a("s_mov_b64 exec, -1")
    a.label("K1_NOTICKET")

    def issue_step(ks):
        for i in range(2):
            a(f"s_add_u32 m0, s43, {ks*8192 + i*1024}")
            a(f"buffer_load_dwordx4 v{24+i}, s[16:19], s44 offen lds")
            vq.issue(("s", ks))
        a("s_add_u32 s44, s44, 122880")
        for mt in range(2):
            a(f"buffer_load_dwordx4 {r4('v', AF(mt, ks))}, v{26+mt}, s[12:15], 0 offen offset:{64*ks}")
            vq.issue(("s", ks))

    UP = 14
    for ks in range(UP):
        issue_step(ks)
    nxt = UP
    srd(a, 20, 10, 11, PQ_OFF, ACT)
    a("s_mul_i32 s48, s41, 3360")
    a(f"s_add_u32 s24, s10, s48\ns_addc_u32 s25, s11, 0\ns_add_u32 s24, s24, {KV_OFF}\ns_addc_u32 s25, s25, 0")
    a("s_mov_b32 s26, 3360\ns_mov_b32 s27, 0x00020000")

    def reads(ks):
        out = []
        for t in range(8):
            for q in range(2):
                off = (ks % 8) * 8192 + q * 1024
                b = BF(ks % 2, t) + 2 * q
                out.append(f"ds_read_b64_tr_b16 a[{b}:{b+1}], v{16+t} offset:{off}")
        return out

    vq.wait(("s", 0), ("s", 1))
    a("s_barrier")
    for r in reads(0):
        a(r)
    for ks in range(20):
        mf = []
        for t in range(8):
            for mt in range(2):
                c = "0" if ks == 0 else r4("v", ACC(mt, t))
                W = r4("a", BF(ks % 2, t)); X = r4("v", AF(mt, ks))
                if t < 3:
                    mf.append(f"v_mfma_f32_16x16x32_bf16 {r4('v', ACC(mt, t))}, {W}, {X}, {c}")
                else:
                    mf.append(f"v_mfma_f32_16x16x32_bf16 {r4('v', ACC(mt, t))}, {X}, {W}, {c}")
        dots = []
        for mt in range(2):
            for i in range(4):
                dots.append(f"v_dot2c_f32_bf16 v{12+mt}, v{AF(mt, ks)+i}, v28")
                dots.append(f"v_dot2c_f32_bf16 v{14+mt}, v{AF(mt, ks)+i}, v{AF(mt, ks)+i}")
        dots = [dots[i] for i in (0, 8, 1, 9, 2, 10, 3, 11, 4, 12, 5, 13, 6, 14, 7, 15)]
        a("s_waitcnt lgkmcnt(8)")
        for i in range(8):
            a(mf[i]); a(dots[2 * i]); a(dots[2 * i + 1])
        a("s_waitcnt lgkmcnt(0)")
        nr = []
        if ks + 1 < 20:
            if (ks + 1) % 2 == 0:
                vq.wait(("s", ks + 1), ("s", ks + 2))
                if ks == 15:
                    pass
                a("s_barrier")
                for _ in range(2):
                    if nxt < 20:
                        issue_step(nxt); nxt += 1
            if (ks + 1) % 8 == 0:
                for t in range(8):
                    a(f"v_add_u32 v{16+t}, 0x10000, v{16+t}")
            nr = reads(ks + 1)
        for i in range(8):
            a(mf[8 + i])
            if nr:
                a(nr[2 * i]); a(nr[2 * i + 1])
        a(f"s_cmp_lg_u32 s42, {ks & 3}\ns_cbranch_scc1 K1_CS{ks}")
        for t in range(8):
            c = "0" if ks < 4 else r4("a", CS(t))
            W = r4("a", BF(ks % 2, t))
            if t < 3:
                a(f"v_mfma_f32_16x16x32_bf16 {r4('a', CS(t))}, {W}, v[28:31], {c}")
            else:
                a(f"v_mfma_f32_16x16x32_bf16 {r4('a', CS(t))}, v[28:31], {W}, {c}")
        a.label(f"K1_CS{ks}", flush=False)
        if ks == 1:
            a("s_cmp_lg_u32 s42, 0\ns_cbranch_scc1 K1_NOZ")
            a("v_readfirstlane_b32 s50, v11")
            a("s_cmp_lg_u32 s50, 0\ns_cbranch_scc1 K1_NOZ")
            a("v_lshlrev_b32 v8, 4, v0\nv_mov_b32 v4, 0\nv_mov_b32 v5, 0\nv_mov_b32 v6, 0\nv_mov_b32 v7, 0")
            for i in range(4):
                a(f"buffer_store_dwordx4 v[4:7], v8, s[24:27], 0 offen offset:{1024*i} sc1")
            a.label("K1_NOZ")
        if ks == 15:
            a("s_cmp_lg_u32 s42, 0\ns_cbranch_scc1 K1_NOP")
            a("s_cmp_lg_u32 s50, 0\ns_cbranch_scc1 K1_NOP")
            a("s_lshl_b32 s48, s41, 2\nv_mov_b32 v8, s48\nv_mov_b32 v9, 1\ns_mov_b64 exec, 1")
            a("buffer_store_dword v9, v8, s[28:31], 0 offen offset:64 sc1")
            a("s_mov_b64 exec, -1")
            a.label("K1_NOP")
    a.fence()
    a("s_lshl_b32 s48, s41, 2\nv_mov_b32 v10, s48")
    a("buffer_load_dword v11, v10, s[28:31], 0 offen offset:64 sc1")
    for r in range(12, 16):
        a(f"v_mov_b32 v4, v{r}\nv_permlane32_swap_b32 v{r}, v4\nv_add_f32 v{r}, v{r}, v4")
        a(f"v_mov_b32 v4, v{r}\nv_permlane16_swap_b32 v{r}, v4\nv_add_f32 v{r}, v{r}, v4")
    a(f"s_mov_b32 s48, {f32(1/640)}\ns_mov_b32 s49, {f32(1e-5)}")
    for mt in range(2):
        a(f"v_mul_f32 v{12+mt}, s48, v{12+mt}")
        a(f"v_mul_f32 v{14+mt}, s48, v{14+mt}")
        a(f"v_fma_f32 v{14+mt}, -v{12+mt}, v{12+mt}, v{14+mt}")
        a(f"v_max_f32 v{14+mt}, 0, v{14+mt}")
        a(f"v_add_f32 v{14+mt}, s49, v{14+mt}")
        a(f"v_rsq_f32 v{14+mt}, v{14+mt}")
        a(f"v_mul_f32 v{12+mt}, v{12+mt}, v{14+mt}")
        a(f"v_sub_f32 v{12+mt}, 0, v{12+mt}")
    a("s_barrier")
    a("s_lshl_b32 s48, s42, 9")
    a("v_lshl_add_u32 v4, v3, 4, s48")
    a("v_lshl_add_u32 v5, v2, 2, s48")
    a("s_lshl_b32 s48, s42, 8\ns_add_u32 s48, s48, 2048")
    a("v_lshl_add_u32 v6, v2, 2, s48")
    a("v_lshl_add_u32 v7, v3, 4, s48")
    set_exec(a, lanemask(lambda l: l % 16 == 0))
    for t in range(3):
        a(f"ds_write_b128 v4, {r4('a', CS(t))} offset:{64*t}")
    set_exec(a, 0xffff)
    for t in range(3, 8):
        a(f"ds_write_b32 v5, a{CS(t)} offset:{64*t}")
    for mt in range(2):
        a(f"ds_write_b32 v6, v{14+mt} offset:{128*mt}")
        a(f"ds_write_b32 v6, v{12+mt} offset:{128*mt+64}")
    set_exec(a, (1 << 64) - 1)
    a("s_waitcnt lgkmcnt(0)\ns_barrier")
    a("v_lshlrev_b32 v4, 4, v3\nv_lshlrev_b32 v5, 2, v2")
    for t in range(3, 8):
        for w in range(4):
            a(f"ds_read_b32 v{32+4*(t-3)+w}, v5 offset:{512*w+64*t}")
    for mt in range(2):
        a(f"ds_read_b128 v[{56+8*mt}:{59+8*mt}], v7 offset:{128*mt}")
        a(f"ds_read_b128 v[{60+8*mt}:{63+8*mt}], v7 offset:{128*mt+64}")
    for t in range(3):
        for w in range(4):
            a(f"ds_read_b128 v[{72+16*t+4*w}:{75+16*t+4*w}], v4 offset:{512*w+64*t}")
    a("s_waitcnt lgkmcnt(12)")
    a(f"s_mov_b32 s52, {f32(LOG2E)}\ns_mov_b32 s53, {f32(LOG2E)}\ns_mov_b32 s54, {f32(1e-6)}\ns_mov_b32 s55, {f32(1e-6)}")
    for t in range(3, 8):
        b = 32 + 4 * (t - 3)
        a(f"v_add_f32 v{b}, v{b}, v{b+1}\nv_add_f32 v{b+2}, v{b+2}, v{b+3}\nv_add_f32 v{b}, v{b}, v{b+2}")

    def phi4(b, tmp):
        for i in range(4):
            a(f"v_min_f32 v{tmp+i}, 0, v{b+i}")
        for i in (0, 2):
            a(f"v_pk_mul_f32 v[{tmp+i}:{tmp+i+1}], v[{tmp+i}:{tmp+i+1}], s[52:53]")
        for i in range(4):
            a(f"v_max_f32 v{b+i}, 0, v{b+i}")
        for i in range(4):
            a(f"v_exp_f32 v{tmp+i}, v{tmp+i}")
        for i in (0, 2):
            a(f"v_pk_add_f32 v[{b+i}:{b+i+1}], v[{b+i}:{b+i+1}], s[54:55]")
        for i in (0, 2):
            a(f"v_pk_add_f32 v[{b+i}:{b+i+1}], v[{b+i}:{b+i+1}], v[{tmp+i}:{tmp+i+1}]")

    OP = lambda kt: 120 + 4 * kt
    a(f"s_mov_b32 s56, 0x00ff00ff\ns_mov_b32 s57, 0x00ff00ff")
    for t in range(3, 8):
        csr = 32 + 4 * (t - 3)
        for mt in range(2):
            b = ACC(mt, t)
            for i in (0, 2):
                a(f"v_pk_mul_f32 v[{140+i}:{141+i}], v[{60+8*mt+i}:{61+8*mt+i}], v[{csr}:{csr+1}] op_sel_hi:[1,0]")
                a(f"v_pk_fma_f32 v[{b+i}:{b+i+1}], v[{b+i}:{b+i+1}], v[{56+8*mt+i}:{57+8*mt+i}], v[{140+i}:{141+i}]")
            if t < 5:
                phi4(b, 144)
            elif t == 5:
                for i in range(4):
                    a(f"v_mov_b32 v{148+i}, v{b+i}")
                phi4(148, 144)
                for i in range(4):
                    a(f"v_cndmask_b32 v{b+i}, v{b+i}, v{148+i}, s[56:57]")
            o = OP(t - 3) + 2 * mt
            a(f"v_cvt_pk_bf16_f32 v{o}, v{b}, v{b+1}\nv_cvt_pk_bf16_f32 v{o+1}, v{b+2}, v{b+3}")
    pairs = [(0, 2), (0, 3), (1, 2), (1, 3), (1, 4), (2, 3), (2, 4)]
    KVD = lambda i: 152 + 4 * i
    for i, (tk, tv) in enumerate(pairs):
        a(f"v_mfma_f32_16x16x32_bf16 {r4('v', KVD(i))}, {r4('v', OP(tk))}, {r4('v', OP(tv))}, 0")
    for tk in range(3):
        a(f"v_mfma_f32_16x16x32_bf16 {r4('v', KVD(7+tk))}, {r4('v', OP(tk))}, v[28:31], 0")
    a("s_mul_i32 s48, s42, 3584\ns_add_u32 s48, s48, 4096")
    a("v_mul_u32_u24 v6, 80, v2\nv_lshl_add_u32 v6, v3, 4, v6\nv_add_u32 v6, s48, v6")
    a("v_subrev_u32 v6, 3200, v6")
    for i, (tk, tv) in enumerate(pairs):
        def ok(l, tk=tk, tv=tv):
            d = 16 * tk + 4 * (l >> 4); e = 16 * tv + (l & 15) - 40
            return d < 40 and 0 <= e < 40 and d // 20 == e // 20
        set_exec(a, lanemask(ok))
        a(f"ds_write_b128 v6, {r4('v', KVD(i))} offset:{3200 + 80*(16*tv-40) + 64*tk}")
    for tk in range(3):
        for hd in range(2):
            m = lanemask(lambda l: (l & 15) == 0 and 16 * tk + 4 * (l >> 4) < 40 and (16 * tk + 4 * (l >> 4)) // 20 == hd)
            if m:
                set_exec(a, m)
                a(f"ds_write_b128 v6, {r4('v', KVD(7+tk))} offset:{3200 + 64*tk + 1600*(hd+1)}")
    set_exec(a, (1 << 64) - 1)
    a("s_waitcnt lgkmcnt(0)\ns_barrier")
    a("v_lshlrev_b32 v6, 2, v0")
    for i in range(4):
        for w in range(4):
            a(f"ds_read_b32 v{152+4*i+w}, v6 offset:{4096 + 3584*w + 1024*i}")
    a("s_mov_b32 s58, 0")
    a.label("K1_POLL")
    a("s_waitcnt vmcnt(0)")
    a("v_readfirstlane_b32 s48, v11")
    a("s_cmp_lg_u32 s48, 0\ns_cbranch_scc1 K1_GO")
    a("s_add_u32 s58, s58, 1\ns_cmp_gt_u32 s58, 0x100000\ns_cbranch_scc1 K1_GO")
    a("s_sleep 1")
    a("buffer_load_dword v11, v10, s[28:31], 0 offen offset:64 sc1")
    a("s_branch K1_POLL")
    a.label("K1_GO")
    a("s_waitcnt lgkmcnt(0)")
    for i in range(4):
        b = 152 + 4 * i
        a(f"v_add_f32 v{b}, v{b}, v{b+1}\nv_add_f32 v{b+2}, v{b+2}, v{b+3}\nv_add_f32 v{b}, v{b}, v{b+2}")
        a(f"buffer_atomic_add_f32 v{b}, v6, s[24:27], 0 offen offset:{1024*i}")
    for t in range(3):
        b = 72 + 16 * t
        for i in (0, 2):
            a(f"v_pk_add_f32 v[{b+i}:{b+i+1}], v[{b+i}:{b+i+1}], v[{b+4+i}:{b+5+i}]")
            a(f"v_pk_add_f32 v[{b+8+i}:{b+9+i}], v[{b+8+i}:{b+9+i}], v[{b+12+i}:{b+13+i}]")
            a(f"v_pk_add_f32 v[{b+i}:{b+i+1}], v[{b+i}:{b+i+1}], v[{b+8+i}:{b+9+i}]")
    a("s_lshl_b32 s48, s40, 3\ns_lshl_b32 s49, s42, 1\ns_add_u32 s48, s48, s49\ns_mul_i32 s48, s48, 20480")
    a("s_mul_i32 s49, s41, 1280\ns_add_u32 s48, s48, s49")
    a("v_lshrrev_b32 v8, 1, v3\nv_lshlrev_b32 v8, 8, v8\nv_and_b32 v9, 1, v3\nv_lshl_add_u32 v8, v9, 3, v8")
    a("v_lshl_add_u32 v8, v2, 4, v8\nv_add_u32 v8, s48, v8")
    for mt in range(2):
        a(f"v_mov_b32 v{4+2*mt}, v{12+mt}\nv_mov_b32 v{5+2*mt}, v{14+mt}")
    for t in range(3):
        csr = 72 + 16 * t
        for mt in range(2):
            b = ACC(mt, t)
            for i in (0, 2):
                a(f"v_pk_mul_f32 v[{140+i}:{141+i}], v[{csr+i}:{csr+i+1}], v[{4+2*mt}:{5+2*mt}] op_sel_hi:[1,0]")
                a(f"v_pk_fma_f32 v[{b+i}:{b+i+1}], v[{b+i}:{b+i+1}], v[{4+2*mt}:{5+2*mt}], v[{140+i}:{141+i}] op_sel:[0,1,0] op_sel_hi:[1,1,1]")
            phi4(b, 144)
            a(f"v_cvt_pk_bf16_f32 v{b}, v{b}, v{b+1}\nv_cvt_pk_bf16_f32 v{b+1}, v{b+2}, v{b+3}")
            if t == 2:
                set_exec(a, 0xffffffff)
            a(f"buffer_store_dwordx2 v[{b}:{b+1}], v8, s[20:23], {'s45' if mt else '0'} offen offset:{512*t}")
            if t == 2:
                set_exec(a, (1 << 64) - 1)
    a.label("K1_END", flush=False)
    a("s_endpgm")
    return kernel_desc("k1_kernel", 352, 256)
```

```python
import sys
from common import *
import k1
out = sys.argv[1] if len(sys.argv) > 1 else f"cdna_kernels/{NAME}.s"
opts = dict(x.split("=") for x in sys.argv[2:])
a = Asm()
launches = [("k1_kernel", 256, 512, k1.K1_LDS)]
descs = []
body = Asm()
descs.append(k1.gen_k1(body, MAP=int(opts.get("map1", 0)), STAMP=int(opts.get("stamp", 0)), opts_rsc=opts.get("rsc", "sc1").replace("plain", ""), XO=opts.get("x", ""), ROT=int(opts.get("rot", 2)), UPF=int(opts.get("upf", 2)), PF=int(opts.get("pf", 0)), LA=int(opts.get("la", 2)), RAMP=int(opts.get("ramp", 1))))
try:
    import kp
    if int(opts.get("kp", 1)):
        launches.append(("kp_kernel", 256, 256, kp.KP_LDS))
        body.hist = []
        descs.append(kp.gen_kp(body, opts))
except ImportError:
    pass
hdr = "".join(f"; @launch kernel={k} grid=({g},1,1) block=({b},1,1) lds={l}\n" for k, g, b, l in launches)
txt = hdr + '.amdgcn_target "amdgcn-amd-amdhsa--gfx950"\n.text\n' + body.text() + '.section .rodata,"a"\n' + "".join(descs)
open(out, "w").write(txt)
print("wrote", out, len(txt), "bytes; nops inserted:", body.nops)
```

```python
from asmb import Asm

NAME = "sequential_preLN__linear_attn_block__mixer_s_mlp__prompt"
S, D, F = 2048, 640, 1728
ACT = S * D * 2
PQ_OFF, H_OFF, HH_OFF, X1_OFF, G_OFF = 0, 0x280000, 0x500000, 0x780000, 0xA00000
G_BYTES = S * F * 2
KV_OFF = 0x1100000
KV_BYTES = 32 * 21 * 20 * 4
STH_OFF = 0x1120000
STX_OFF = 0x1140000
ST_BYTES = 32 * 8 * 64 * 8
FLAG_OFF = 0x1160000
FLAG_BYTES = 8192
WP_OFF = 0x1400000
WPO, WP1, WP2 = WP_OFF, WP_OFF + 800 * 1024, WP_OFF + 1600 * 1024
WP3 = WP_OFF + 2400 * 1024
WP4 = WP3 + 2160 * 1024
WP_BYTES = 6720 * 1024
LOG2E = 1.4426950408889634


def f32(x):
    import struct
    return "0x%08x" % struct.unpack("<I", struct.pack("<f", x))[0]


class VQ:
    def __init__(self, a):
        self.a = a
        self.q = []

    def issue(self, tag):
        self.q.append(tag)
        assert len(self.q) <= 63, "too many outstanding vmem ops"

    def wait(self, *tags):
        last = -1
        for i, t in enumerate(self.q):
            if t in tags:
                last = i
        if last < 0:
            return
        n = len(self.q) - 1 - last
        self.a(f"s_waitcnt vmcnt({n})")
        self.q = self.q[last + 1:]

    def wait_all(self):
        self.a("s_waitcnt vmcnt(0)")
        self.q = []


def srd(a, d, lo, hi, off, size):
    if off:
        a(f"s_add_u32 s{d}, s{lo}, {off}\ns_addc_u32 s{d+1}, s{hi}, 0")
    else:
        a(f"s_mov_b32 s{d}, s{lo}\ns_mov_b32 s{d+1}, s{hi}")
    a(f"s_mov_b32 s{d+2}, {size}\ns_mov_b32 s{d+3}, 0x00020000")


def kernel_head(a, label):
    a.raw(f".globl {label}\n.p2align 8\n.type {label},@function\n{label}:")


def kernel_desc(label, vgpr, accum, sgpr=102):
    return f""".p2align 6
.amdhsa_kernel {label}
  .amdhsa_next_free_vgpr {vgpr}
  .amdhsa_next_free_sgpr {sgpr}
  .amdhsa_accum_offset {accum}
  .amdhsa_group_segment_fixed_size 0
  .amdhsa_kernarg_size 88
  .amdhsa_user_sgpr_count 2
  .amdhsa_user_sgpr_kernarg_segment_ptr 1
  .amdhsa_system_sgpr_workgroup_id_x 1
.end_amdhsa_kernel
"""


def lanemask(fn):
    m = 0
    for l in range(64):
        if fn(l):
            m |= 1 << l
    return m


def set_exec(a, m):
    if m == (1 << 64) - 1:
        a("s_mov_b64 exec, -1")
    else:
        a(f"s_mov_b32 exec_lo, 0x{m & 0xffffffff:x}\ns_mov_b32 exec_hi, 0x{m >> 32:x}")

STAMP_OFF = 0x1200000


class Stamps:
    def __init__(self, a, on, base=0):
        self.a, self.on, self.n, self.base = a, on, 0, base

    def __call__(self):
        if not self.on:
            return
        r = 70 + 2 * self.n
        self.a(f"s_memtime s[{r}:{r+1}]\ns_waitcnt lgkmcnt(0)")
        self.n += 1
        assert self.n <= 13

    def dump(self, wslo, wshi, wave_sgpr):
        if not self.on:
            return
        a = self.a
        a("s_waitcnt vmcnt(0)")
        self()
        srd(a, 96, wslo, wshi, STAMP_OFF + self.base, 0x40000)
        a(f"s_lshl_b32 s100, s2, 8\ns_lshl_b32 s101, s{wave_sgpr}, 6\ns_add_u32 s100, s100, s101\nv_mov_b32 v1, s100\ns_mov_b64 exec, 1")
        for i in range(self.n):
            a(f"v_mov_b32 v2, s{70+2*i}\nbuffer_store_dword v2, v1, s[96:99], 0 offen offset:{4*i}")
        a("s_mov_b64 exec, -1")
```

```python
from common import *

K1_LDS = 163840
WSL = 15360
SLOT = WSL + 16384
NSLOT = 4
STG = 4 * SLOT
CST = [0, 2, 4, 5, 7, 9, 11, 13]


def gen_k1(a, MAP=0, STAMP=0, opts_rsc='sc1', XO='', ROT=2, UPF=2, PF=0, LA=2, RAMP=1, RPG=6):
    kernel_head(a, "k1_kernel")
    st = Stamps(a, STAMP)
    vq = VQ(a)
    AF = lambda buf, mt: 36 + (buf * 2 + mt) * 4
    CF = lambda buf, i: 52 + (buf * 2 + i) * 4
    CS = lambda i: 68 + 4 * i
    SM = lambda mt: 76 + 4 * mt
    GR = lambda mt: 84 + 4 * mt
    ACC = lambda mt, t: 104 + (mt * 8 + t) * 4
    BF = lambda buf, t: (buf * 8 + t) * 4
    r4 = lambda k, b: f"{k}[{b}:{b+3}]"
    RSC = opts_rsc
    a("s_cmp_ge_u32 s2, 256\ns_cbranch_scc1 K1_END")
    st()
    a("s_load_dwordx4 s[4:7], s[0:1], 0")
    a("s_load_dwordx4 s[8:11], s[0:1], 72")
    a("s_load_dwordx8 s[52:59], s[0:1], 32")
    a("s_load_dwordx2 s[60:61], s[0:1], 16")
    a("s_and_b32 s46, s2, 7\ns_lshr_b32 s47, s2, 3")
    if MAP == 0:
        a("s_lshr_b32 s40, s47, 4\ns_lshl_b32 s46, s46, 1\ns_add_u32 s40, s40, s46\ns_and_b32 s41, s47, 15")
    else:
        a("s_lshr_b32 s40, s47, 3\ns_lshr_b32 s48, s46, 1\ns_lshl_b32 s48, s48, 2\ns_add_u32 s40, s40, s48")
        a("s_and_b32 s41, s47, 7\ns_and_b32 s48, s46, 1\ns_lshl_b32 s48, s48, 3\ns_add_u32 s41, s41, s48")
    a("v_lshrrev_b32 v1, 6, v0")
    a("v_and_b32 v2, 15, v0")
    a("v_bfe_u32 v3, v0, 4, 2")
    a("v_readfirstlane_b32 s42, v1")
    a("v_and_b32 v1, 63, v0")
    a("s_cmp_lt_u32 s42, 4\ns_cbranch_scc1 K1_COMPUTE")
    a("s_sub_u32 s42, s42, 4\nv_subrev_u32 v0, 256, v0")
    a("s_mul_i32 s48, s41, 80\ns_xor_b32 s49, s41, 1\ns_mul_i32 s49, s49, 80")
    a("s_lshl_b32 s50, s42, 8")
    for u in range(4):
        a(f"v_add_u32 v4, s50, v1\nv_add_u32 v4, {64*u}, v4")
        a("v_mul_u32_u24 v5, 4370, v4\nv_lshrrev_b32 v5, 16, v5")
        a("v_mul_u32_u24 v6, 15, v5\nv_sub_u32 v6, v4, v6")
        a("v_and_b32 v7, 1, v5\nv_bfe_u32 v8, v5, 1, 2\nv_lshl_or_b32 v7, v7, 2, v8\nv_and_b32 v5, 0x78, v5\nv_or_b32 v5, v5, v7")
        a("v_mul_u32_u24 v5, 3840, v5\nv_lshl_add_u32 v5, v6, 4, v5")
        a("v_mov_b32 v7, s48\nv_mov_b32 v8, s49\nv_cmp_gt_u32 vcc, 5, v6\nv_cndmask_b32 v7, v7, v8, vcc")
        a("v_mov_b32 v8, 1200\nv_cndmask_b32 v8, v8, 0, vcc\nv_add3_u32 v5, v5, v7, v8")
        a(f"v_mov_b32 v8, 1200\nv_cmp_lt_u32 vcc, 9, v6\nv_cndmask_b32 v8, 0, v8, vcc\nv_add_u32 v{16+u}, v5, v8")
    a("v_lshrrev_b32 v4, 3, v1\nv_and_b32 v5, 7, v1\nv_xor_b32 v5, v5, v4")
    a("s_lshl_b32 s48, s40, 7\ns_lshl_b32 s49, s42, 5\ns_add_u32 s48, s48, s49")
    a("v_add_u32 v4, s48, v4\nv_mul_u32_u24 v4, 1280, v4\nv_lshl_add_u32 v20, v5, 4, v4")
    a("s_lshl_b32 s43, s42, 12")
    if ROT == 0:
        a("s_mov_b32 s51, 0")
    elif ROT == 1:
        a("s_and_b32 s51, s2, 7")
    elif ROT == 2:
        a("s_mul_i32 s51, s2, 6554\ns_lshr_b32 s51, s51, 16\ns_mul_i32 s51, s51, 10\ns_sub_u32 s51, s2, s51")
    a("s_mov_b32 s33, s51")
    a("s_waitcnt lgkmcnt(0)")
    srd(a, 12, 4, 5, 0, ACT)
    srd(a, 16, 6, 7, 0, 640 * 3840)
    srd(a, 28, 8, 9, 0, 256)
    a("s_lshl_b32 s48, s41, 2\nv_mov_b32 v12, s48\nv_mov_b32 v11, 1")
    a("s_cmp_lg_u32 s42, 0\ns_cbranch_scc1 K1_NOTICKET")
    a("s_mov_b64 exec, 1")
    a("buffer_atomic_add v11, v12, s[28:31], 0 offen sc0")
    a("s_mov_b64 exec, -1")
    a.label("K1_NOTICKET")

    def issue_group(G):
        base = (G % NSLOT) * SLOT
        a(f"s_add_u32 s44, s33, {G}\ns_sub_u32 s45, s44, 10\ns_cmp_ge_u32 s44, 10\ns_cselect_b32 s45, s45, s44")
        a("s_mul_i32 s44, s45, 245760\ns_lshl_b32 s45, s45, 7")
        for u in range(4):
            a(f"s_add_u32 m0, s43, {base + WSL + u*1024}")
            a(f"s_add_u32 s48, s45, {u*10240}")
            a("buffer_load_dwordx4 v20, s[12:15], s48 offen lds")
            vq.issue(("s", G))
            if u == 3:
                a(f"s_cmp_eq_u32 s42, 3\ns_cbranch_scc1 K1_G{G}")
            a(f"s_add_u32 m0, s43, {base + u*1024}")
            a(f"buffer_load_dwordx4 v{16+u}, s[16:19], s44 offen lds")
            if u < 3:
                vq.issue(("s", G))
        a.label(f"K1_G{G}", flush=False)

    def repack_issue():
        srd(a, 64, 10, 11, WP_OFF, WP_BYTES)
        a("v_bfe_u32 v4, v0, 3, 2\nv_bfe_u32 v5, v0, 5, 1\nv_and_b32 v6, 7, v0")
        a("v_lshrrev_b32 v7, 1, v4\nv_lshlrev_b32 v7, 1, v7\nv_xor_b32 v6, v6, v7\nv_lshlrev_b32 v6, 4, v6")
        a("v_xor_b32 v7, 64, v6")
        for grp in range(2):
            L = f"K1_R{grp}"
            a(f"s_lshl_b32 s48, s2, 2\ns_add_u32 s48, s48, s42")
            if grp:
                a(f"s_add_u32 s48, s48, 1024\ns_cmp_ge_u32 s48, 1680\ns_cbranch_scc1 {L}_SKIP")
            a("s_mov_b32 s49, 1280\ns_mov_b32 s51, 40")
            a(f"s_cmp_ge_u32 s48, 1140\ns_cbranch_scc1 {L}_W4")
            a(f"s_cmp_ge_u32 s48, 600\ns_cbranch_scc1 {L}_W3")
            a("s_mul_i32 s62, s48, 328\ns_lshr_b32 s62, s62, 16")
            a("s_mul_i32 s63, s62, 200\ns_sub_u32 s48, s48, s63\ns_mul_i32 s63, s62, 800")
            a("s_cmp_eq_u32 s62, 1\ns_cselect_b32 s36, s52, s54\ns_cselect_b32 s37, s53, s55")
            a("s_cmp_eq_u32 s62, 0\ns_cselect_b32 s36, s60, s36\ns_cselect_b32 s37, s61, s37")
            a(f"s_mov_b32 s38, {640*1280}\ns_mov_b32 s68, 6554\ns_mov_b32 s69, 10")
            a(f"s_branch {L}_DIV")
            a.label(f"{L}_W3", flush=False)
            a(f"s_sub_u32 s48, s48, 600\ns_mov_b32 s63, 2400\ns_mov_b32 s36, s56\ns_mov_b32 s37, s57\ns_mov_b32 s38, {640*3456}")
            a("s_mov_b32 s49, 3456\ns_mov_b32 s51, 108\ns_mov_b32 s68, 2428\ns_mov_b32 s69, 27\ns_mov_b32 s62, 3")
            a(f"s_branch {L}_DIV")
            a.label(f"{L}_W4", flush=False)
            a(f"s_sub_u32 s48, s48, 1140\ns_mov_b32 s63, 4560\ns_mov_b32 s36, s58\ns_mov_b32 s37, s59\ns_mov_b32 s38, {1728*1280}")
            a("s_mov_b32 s68, 6554\ns_mov_b32 s69, 10\ns_mov_b32 s62, 4")
            a.label(f"{L}_DIV", flush=False)
            a("s_mov_b32 s39, 0x00020000")
            a("s_mul_i32 s68, s48, s68\ns_lshr_b32 s68, s68, 16")
            a("s_mul_i32 s69, s68, s69\ns_sub_u32 s69, s48, s69")
            a("s_mul_i32 s48, s68, s51\ns_lshl_b32 s51, s69, 2\ns_add_u32 s48, s48, s51\ns_add_u32 s48, s48, s63")
            a(f"s_lshl_b32 s{46+grp}, s48, 10")
            a(f"s_cmp_eq_u32 s62, 0\ns_cbranch_scc1 {L}_WO")
            a("s_lshl_b32 s68, s68, 5\ns_mov_b32 s48, 4\ns_mov_b32 s51, 1\ns_mov_b32 s63, 8")
            a(f"s_branch {L}_MAP")
            a.label(f"{L}_WO", flush=False)
            a("s_mul_i32 s62, s68, 52429\ns_lshr_b32 s62, s62, 18")
            a("s_mul_i32 s63, s62, 5\ns_sub_u32 s63, s68, s63")
            a("s_mul_i32 s68, s62, 160\ns_mul_i32 s62, s63, 40\ns_cmp_eq_u32 s63, 4")
            a("s_cselect_b32 s62, 16, s62\ns_cselect_b32 s48, 80, 20\ns_cselect_b32 s51, 20, 1\ns_cselect_b32 s63, 1, 4")
            a("s_add_u32 s68, s68, s62")
            a.label(f"{L}_MAP", flush=False)
            a("v_mul_lo_u32 v8, v5, s48\nv_mul_lo_u32 v9, v4, s51\nv_add_u32 v8, v8, v9\nv_mul_lo_u32 v8, v8, s49")
            a("v_add_u32 v9, v8, v7\nv_add_u32 v8, v8, v6")
            a("s_mul_i32 s68, s68, s49\ns_lshl_b32 s69, s69, 7\ns_add_u32 s68, s68, s69\ns_mul_i32 s63, s63, s49")
            a("s_lshl_b32 s62, s42, 13")
            for i in range(4):
                a(f"s_add_u32 m0, s62, {STG + grp*4096 + i*1024}")
                a(f"buffer_load_dwordx4 v{8 + (i & 1)}, s[36:39], s68 offen lds")
                if grp == 0:
                    vq.issue(("r", 0))
                if i < 3:
                    a("s_add_u32 s68, s68, s63")
            a.label(f"{L}_SKIP", flush=False)

    def repack_reads():
        a("v_bfe_u32 v4, v0, 2, 2\nv_lshrrev_b32 v5, 1, v4\nv_and_b32 v6, 1, v3\nv_lshl_or_b32 v5, v6, 1, v5")
        a("v_lshl_add_u32 v4, v3, 3, v4\nv_lshlrev_b32 v4, 7, v4\nv_and_b32 v6, 3, v0\nv_lshl_add_u32 v4, v6, 3, v4")
        a(f"s_lshl_b32 s62, s42, 13\ns_add_u32 s62, s62, {STG}\nv_add_u32 v4, s62, v4")
        for t in range(4):
            a(f"v_xor_b32 v6, {t}, v5\nv_lshl_add_u32 v{7+t}, v6, 5, v4")
        for grp in range(2):
            for t in range(4):
                for q in range(2):
                    b = 16 * grp + 4 * t + 2 * q
                    a(f"ds_read_b64_tr_b16 a[{b}:{b+1}], v{7+t} offset:{4096*grp + 512*q}")

    def repack_stores():
        a("v_lshlrev_b32 v4, 4, v1")
        for grp in range(2):
            if grp:
                a("s_cmp_ge_u32 s2, 164\ns_cbranch_scc1 K1_RS_SKIP")
            for t in range(4):
                b = 16 * grp + 4 * t
                a(f"buffer_store_dwordx4 a[{b}:{b+3}], v4, s[64:67], s{46+grp} offen offset:{1024*t} {RSC}")
        a.label("K1_RS_SKIP", flush=False)


    for G in range(UPF):
        issue_group(G)
    nxt = UPF
    srd(a, 20, 10, 11, FLAG_OFF, FLAG_BYTES)
    repack_issue()
    a("s_mul_i32 s48, s41, 3360")
    a(f"s_add_u32 s24, s10, s48\ns_addc_u32 s25, s11, 0\ns_add_u32 s24, s24, {KV_OFF}\ns_addc_u32 s25, s25, 0")
    a("s_mov_b32 s26, 3360\ns_mov_b32 s27, 0x00020000")
    for G in range(10):
        vq.wait(("s", G))
        a("s_barrier")
        if G == 0:
            a("s_cmp_lg_u32 s42, 0\ns_cbranch_scc1 K1_NOZ")
            a("s_mov_b64 exec, 31")
            a("s_lshl_b32 s48, s2, 2\nv_lshl_add_u32 v8, v0, 10, s48\nv_mov_b32 v4, 0")
            a("buffer_store_dword v4, v8, s[20:23], 0 offen")
            a("s_mov_b64 exec, -1")
            a("v_readfirstlane_b32 s50, v11")
            a("s_cmp_lg_u32 s50, 0\ns_cbranch_scc1 K1_NOZ")
            a("v_lshlrev_b32 v8, 4, v0\nv_mov_b32 v4, 0\nv_mov_b32 v5, 0\nv_mov_b32 v6, 0\nv_mov_b32 v7, 0")
            for i in range(4):
                a(f"buffer_store_dwordx4 v[4:7], v8, s[24:27], 0 offen offset:{1024*i} sc1")
            a.label("K1_NOZ")
        for _ in range(RAMP):
            if nxt < 10 and nxt <= G + NSLOT - 1 and nxt <= G + LA:
                issue_group(nxt); nxt += 1
        if G == 5:
            a("s_cmp_lg_u32 s42, 0\ns_cbranch_scc1 K1_NOP")
            a("s_cmp_lg_u32 s50, 0\ns_cbranch_scc1 K1_NOP")
            a("v_mov_b32 v13, 1\ns_mov_b64 exec, 1")
            a("buffer_store_dword v13, v12, s[28:31], 0 offen offset:64 sc1")
            a("s_mov_b64 exec, -1")
            a.label("K1_NOP")
        if G == RPG:
            repack_reads()
            a("s_waitcnt lgkmcnt(0)")
            repack_stores()
    a("s_endpgm")
    a.label("K1_COMPUTE")
    a("v_bfe_u32 v4, v0, 2, 2\nv_and_b32 v5, 3, v0")
    a("v_lshlrev_b32 v6, 2, v3\nv_add_u32 v6, v6, v4\nv_mul_u32_u24 v6, 480, v6\nv_lshl_add_u32 v16, v5, 3, v6")
    a("v_and_b32 v4, 7, v2\nv_xor_b32 v4, v4, v3\nv_lshlrev_b32 v4, 4, v4\nv_lshl_add_u32 v4, v2, 7, v4")
    a(f"s_lshl_b32 s48, s42, 12\ns_add_u32 s48, s48, {WSL}")
    a("v_add_u32 v17, s48, v4\nv_xor_b32 v18, 64, v17\nv_add_u32 v19, 2048, v17\nv_add_u32 v20, 2048, v18")
    for i in range(4):
        a(f"v_mov_b32 v{32+i}, 0x3f803f80")
    a("s_lshl_b32 s48, s42, 6\ns_cmp_ge_u32 s42, 2\ns_cselect_b32 s49, 16, 0\ns_sub_u32 s48, s48, s49")
    a("s_cmp_eq_u32 s42, 1\ns_cselect_b32 s49, 16, 32\ns_add_u32 s49, s48, s49")
    a("v_add_u32 v21, s48, v16\nv_add_u32 v22, s49, v16")
    a("s_waitcnt lgkmcnt(0)")
    if PF:
        srd(a, 12, 4, 5, 0, ACT)
        srd(a, 16, 6, 7, 0, 640 * 3840)
        a("v_lshlrev_b32 v4, 4, v0\ns_mul_i32 s48, s2, 9600\ns_mul_i32 s49, s2, 10240")
        for i in range(3):
            a(f"buffer_load_dwordx4 v[{36+4*i}:{39+4*i}], v4, s[16:19], s48 offen\ns_add_u32 s48, s48, 4096")
        for i in range(3):
            a(f"buffer_load_dwordx4 v[{48+4*i}:{51+4*i}], v4, s[12:15], s49 offen\ns_add_u32 s49, s49, 4096")
        a("s_waitcnt vmcnt(0)")
    srd(a, 28, 8, 9, 0, 256)
    srd(a, 20, 10, 11, PQ_OFF, ACT)
    a("s_mul_i32 s48, s41, 3360")
    a(f"s_add_u32 s24, s10, s48\ns_addc_u32 s25, s11, 0\ns_add_u32 s24, s24, {KV_OFF}\ns_addc_u32 s25, s25, 0")
    a("s_mov_b32 s26, 3360\ns_mov_b32 s27, 0x00020000")

    def set_addr(G):
        base = (G % NSLOT) * SLOT
        return [f"v_add_u32 v{23+i}, {base}, v{16+i}" for i in range(7)]

    def reads(ks):
        kk = ks & 1
        out = [f"ds_read_b128 {r4('v', AF(ks % 2, mt))}, v{24 + 2*mt + kk}" for mt in range(2)]
        for t in range(8):
            for q in range(2):
                b = BF(ks % 2, t) + 2 * q
                out.append(f"ds_read_b64_tr_b16 a[{b}:{b+1}], v23 offset:{kk*7680 + 240*q + 16*CST[t]}")
        for i in range(2):
            for q in range(2):
                b = CF(ks % 2, i) + 2 * q
                out.append(f"ds_read_b64_tr_b16 v[{b}:{b+1}], v{28+i} offset:{kk*7680 + 240*q}")
        return out

    st()
    for x in set_addr(0):
        a(x)
    a("s_barrier")
    st()
    for r in reads(0):
        a(r)
    ONES = "v[32:35]"
    for ks in range(20):
        if ks in (5, 10): st()
        mf = []
        for mt in range(2):
            X = r4("v", AF(ks % 2, mt))
            mf.append(f"v_mfma_f32_16x16x32_bf16 {r4('v', SM(mt))}, {ONES}, {X}, " + ("0" if ks == 0 else r4('v', SM(mt))))
            mf.append(f"v_mfma_f32_16x16x32_bf16 {r4('v', GR(mt))}, {X}, {X}, " + ("0" if ks == 0 else r4('v', GR(mt))))
        for t in range(8):
            for mt in range(2):
                c = "0" if ks == 0 else r4("v", ACC(mt, t))
                W = r4("a", BF(ks % 2, t)); X = r4("v", AF(ks % 2, mt))
                if t < 3:
                    mf.append(f"v_mfma_f32_16x16x32_bf16 {r4('v', ACC(mt, t))}, {W}, {X}, {c}")
                else:
                    mf.append(f"v_mfma_f32_16x16x32_bf16 {r4('v', ACC(mt, t))}, {X}, {W}, {c}")
        mf += [f"v_mfma_f32_16x16x32_bf16 {r4('v', CS(i))}, {ONES}, {r4('v', CF(ks % 2, i))}, " + ("0" if ks == 0 else r4('v', CS(i))) for i in range(2)]
        a("s_waitcnt lgkmcnt(0)")
        nr = []
        if ks + 1 < 20:
            if (ks + 1) % 2 == 0:
                a("s_barrier")
                nr = set_addr((ks + 1) // 2)
            nr = nr + reads(ks + 1)
        NM = 19
        for i in range(22):
            a(mf[i])
            if i < NM:
                for r in nr[(len(nr) * i) // NM:(len(nr) * (i + 1)) // NM]:
                    a(r)
    a.fence()
    st()
    for mt in range(2):
        a(f"v_mov_b32 v{12+mt}, v{SM(mt)}")
        a(f"v_mov_b32 v{14+mt}, 0")
        for i in range(4):
            m = lanemask(lambda l: (l & 15) % 4 == i and (l >> 4) == (l & 15) // 4)
            set_exec(a, m)
            a(f"v_mov_b32 v{14+mt}, v{GR(mt)+i}")
        set_exec(a, (1 << 64) - 1)
    for r in range(14, 16):
        a(f"v_mov_b32 v4, v{r}\nv_permlane32_swap_b32 v{r}, v4\nv_add_f32 v{r}, v{r}, v4")
        a(f"v_mov_b32 v4, v{r}\nv_permlane16_swap_b32 v{r}, v4\nv_add_f32 v{r}, v{r}, v4")
    a(f"s_mov_b32 s48, {f32(1/640)}\ns_mov_b32 s49, {f32(1e-5)}")
    for mt in range(2):
        a(f"v_mul_f32 v{12+mt}, s48, v{12+mt}")
        a(f"v_mul_f32 v{14+mt}, s48, v{14+mt}")
        a(f"v_fma_f32 v{14+mt}, -v{12+mt}, v{12+mt}, v{14+mt}")
        a(f"v_max_f32 v{14+mt}, 0, v{14+mt}")
        a(f"v_add_f32 v{14+mt}, s49, v{14+mt}")
        a(f"v_rsq_f32 v{14+mt}, v{14+mt}")
        a(f"v_mul_f32 v{12+mt}, v{12+mt}, v{14+mt}")
        a(f"v_sub_f32 v{12+mt}, 0, v{12+mt}")
    SC = 2 * SLOT
    a(f"s_lshl_b32 s48, s42, 7\ns_add_u32 s48, s48, {SC}")
    a("v_lshl_add_u32 v5, v2, 2, s48")
    a(f"s_lshl_b32 s48, s42, 8\ns_add_u32 s48, s48, {SC+2048}")
    a("v_lshl_add_u32 v6, v2, 2, s48")
    a("v_lshl_add_u32 v7, v3, 4, s48")
    set_exec(a, 0xffff)
    for i in range(2):
        a(f"ds_write_b32 v5, v{CS(i)} offset:{64*i}")
    for mt in range(2):
        a(f"ds_write_b32 v6, v{14+mt} offset:{128*mt}")
        a(f"ds_write_b32 v6, v{12+mt} offset:{128*mt+64}")
    set_exec(a, (1 << 64) - 1)
    a("s_lshl_b32 s48, s41, 2\nv_mov_b32 v10, s48")
    a("buffer_load_dword v11, v10, s[28:31], 0 offen offset:64 sc1")
    a("s_waitcnt lgkmcnt(0)\ns_barrier")
    st()
    a(f"v_lshlrev_b32 v4, 4, v3\nv_lshlrev_b32 v5, 2, v2\nv_add_u32 v4, {SC}, v4\nv_add_u32 v5, {SC}, v5")
    for t in range(3, 8):
        a(f"ds_read_b32 v{36+2*(t-3)}, v5 offset:{64*t}")
    RF = lambda mt: 46 + 8 * mt
    for mt in range(2):
        a(f"ds_read_b128 v[{RF(mt)}:{RF(mt)+3}], v7 offset:{128*mt}")
        a(f"ds_read_b128 v[{RF(mt)+4}:{RF(mt)+7}], v7 offset:{128*mt+64}")
    for t in range(3):
        a(f"ds_read_b128 v[{62+4*t}:{65+4*t}], v4 offset:{64*t}")
    a(f"s_mov_b32 s52, {f32(LOG2E)}\ns_mov_b32 s53, {f32(LOG2E)}\ns_mov_b32 s54, {f32(1e-6)}\ns_mov_b32 s55, {f32(1e-6)}")
    a("s_waitcnt lgkmcnt(3)")

    def phi4(b, tmp):
        for i in range(4):
            a(f"v_min_f32 v{tmp+i}, 0, v{b+i}")
        for i in (0, 2):
            a(f"v_pk_mul_f32 v[{tmp+i}:{tmp+i+1}], v[{tmp+i}:{tmp+i+1}], s[52:53]")
        for i in range(4):
            a(f"v_max_f32 v{b+i}, 0, v{b+i}")
        for i in range(4):
            a(f"v_exp_f32 v{tmp+i}, v{tmp+i}")
        for i in (0, 2):
            a(f"v_pk_add_f32 v[{b+i}:{b+i+1}], v[{b+i}:{b+i+1}], s[54:55]")
        for i in (0, 2):
            a(f"v_pk_add_f32 v[{b+i}:{b+i+1}], v[{b+i}:{b+i+1}], v[{tmp+i}:{tmp+i+1}]")

    OP = lambda kt: 74 + 4 * kt
    a(f"s_mov_b32 s56, 0x00ff00ff\ns_mov_b32 s57, 0x00ff00ff")
    for t in range(3, 8):
        csr = 36 + 2 * (t - 3)
        for mt in range(2):
            b = ACC(mt, t)
            for i in (0, 2):
                a(f"v_pk_mul_f32 v[{94+i}:{95+i}], v[{RF(mt)+4+i}:{RF(mt)+5+i}], v[{csr}:{csr+1}] op_sel_hi:[1,0]")
                a(f"v_pk_fma_f32 v[{b+i}:{b+i+1}], v[{b+i}:{b+i+1}], v[{RF(mt)+i}:{RF(mt)+1+i}], v[{94+i}:{95+i}]")
            if t < 5:
                phi4(b, 98)
            elif t == 5:
                for i in range(4):
                    a(f"v_mov_b32 v{4+i}, v{b+i}")
                phi4(4, 98)
                for i in range(4):
                    a(f"v_cndmask_b32 v{b+i}, v{b+i}, v{4+i}, s[56:57]")
            o = OP(t - 3) + 2 * mt
            a(f"v_cvt_pk_bf16_f32 v{o}, v{b}, v{b+1}\nv_cvt_pk_bf16_f32 v{o+1}, v{b+2}, v{b+3}")
    pairs = [(0, 2), (0, 3), (1, 2), (1, 3), (1, 4), (2, 3), (2, 4)]
    KVD = lambda i: 4 * i
    for i, (tk, tv) in enumerate(pairs):
        a(f"v_mfma_f32_16x16x32_bf16 {r4('a', KVD(i))}, {r4('v', OP(tk))}, {r4('v', OP(tv))}, 0")
    for tk in range(3):
        a(f"v_mfma_f32_16x16x32_bf16 {r4('a', KVD(7+tk))}, {r4('v', OP(tk))}, {ONES}, 0")
    a(f"s_mul_i32 s48, s42, 3584\ns_add_u32 s48, s48, {SC + 4096 - 3200}")
    a("v_mul_u32_u24 v6, 80, v2\nv_lshl_add_u32 v6, v3, 4, v6\nv_add_u32 v6, s48, v6")
    for i, (tk, tv) in enumerate(pairs):
        def ok(l, tk=tk, tv=tv):
            d = 16 * tk + 4 * (l >> 4); e = 16 * tv + (l & 15) - 40
            return d < 40 and 0 <= e < 40 and d // 20 == e // 20
        set_exec(a, lanemask(ok))
        a(f"ds_write_b128 v6, {r4('a', KVD(i))} offset:{3200 + 80*(16*tv-40) + 64*tk}")
    for tk in range(3):
        for hd in range(2):
            m = lanemask(lambda l: (l & 15) == 0 and 16 * tk + 4 * (l >> 4) < 40 and (16 * tk + 4 * (l >> 4)) // 20 == hd)
            if m:
                set_exec(a, m)
                a(f"ds_write_b128 v6, {r4('a', KVD(7+tk))} offset:{3200 + 64*tk + 1600*(hd+1)}")
    set_exec(a, (1 << 64) - 1)
    a("s_waitcnt lgkmcnt(0)\ns_barrier")
    st()
    a(f"v_lshlrev_b32 v6, 2, v0\nv_add_u32 v7, {SC+4096}, v6")
    for i in range(4):
        for w in range(4):
            a(f"ds_read_b32 v{36+4*i+w}, v7 offset:{3584*w + 1024*i}")
    a("s_mov_b32 s58, 0")
    a.label("K1_POLL")
    a("s_waitcnt vmcnt(0)")
    a("v_readfirstlane_b32 s48, v11")
    a("s_cmp_lg_u32 s48, 0\ns_cbranch_scc1 K1_GO")
    a("s_add_u32 s58, s58, 1\ns_cmp_gt_u32 s58, 0x100000\ns_cbranch_scc1 K1_GO")
    a("s_sleep 1")
    a("buffer_load_dword v11, v10, s[28:31], 0 offen offset:64 sc1")
    a("s_branch K1_POLL")
    a.label("K1_GO")
    a("s_waitcnt lgkmcnt(0)")
    st()
    for i in range(4):
        b = 36 + 4 * i
        a(f"v_add_f32 v{b}, v{b}, v{b+1}\nv_add_f32 v{b+2}, v{b+2}, v{b+3}\nv_add_f32 v{b}, v{b}, v{b+2}")
        a(f"buffer_atomic_add_f32 v{b}, v6, s[24:27], 0 offen offset:{1024*i}")
    a("s_lshl_b32 s48, s40, 3\ns_lshl_b32 s49, s42, 1\ns_add_u32 s48, s48, s49\ns_mul_i32 s48, s48, 20480")
    a("s_xor_b32 s49, s41, 1\ns_mul_i32 s49, s49, 1280\ns_add_u32 s48, s48, s49\ns_mov_b32 s45, 20480")
    a("v_and_b32 v9, 1, v3\nv_lshrrev_b32 v8, 1, v3\nv_lshl_add_u32 v8, v9, 1, v8\nv_lshlrev_b32 v8, 8, v8")
    a("v_lshl_add_u32 v8, v2, 4, v8\nv_add_u32 v8, s48, v8")
    a("v_lshlrev_b32 v9, 3, v9\nv_lshl_add_u32 v9, v2, 4, v9\nv_add_u32 v9, s48, v9")
    for mt in range(2):
        a(f"v_mov_b32 v{4+2*mt}, v{12+mt}\nv_mov_b32 v{5+2*mt}, v{14+mt}")
    for mt in range(2):
        so = 's45' if mt else '0'
        for t in range(3):
            csr = 62 + 4 * t
            b = ACC(mt, t)
            for i in (0, 2):
                a(f"v_pk_mul_f32 v[{94+i}:{95+i}], v[{csr+i}:{csr+i+1}], v[{4+2*mt}:{5+2*mt}] op_sel_hi:[1,0]")
                a(f"v_pk_fma_f32 v[{b+i}:{b+i+1}], v[{b+i}:{b+i+1}], v[{4+2*mt}:{5+2*mt}], v[{94+i}:{95+i}] op_sel:[0,1,0] op_sel_hi:[1,1,1]")
            phi4(b, 98)
            o = 76 + 8 * mt + 2 * t
            a(f"v_cvt_pk_bf16_f32 v{o}, v{b}, v{b+1}\nv_cvt_pk_bf16_f32 v{o+1}, v{b+2}, v{b+3}")
            if t == 1:
                o = 76 + 8 * mt
                a(f"v_permlane16_swap_b32 v{o}, v{o+2}\nv_permlane16_swap_b32 v{o+1}, v{o+3}")
                a(f"buffer_store_dwordx4 v[{o}:{o+3}], v8, s[20:23], {so} offen")
            if t == 2:
                set_exec(a, 0xffffffff)
                a(f"buffer_store_dwordx2 v[{o}:{o+1}], v9, s[20:23], {so} offen offset:1024")
                set_exec(a, (1 << 64) - 1)
    st()
    st.dump(10, 11, 42)
    a.label("K1_END", flush=False)
    a("s_endpgm")
    return kernel_desc("k1_kernel", 232, 168)
```

```python
from common import *

KP_LDS = 163840
R_OFF = 102400
ALL = (1 << 64) - 1
GC1 = -2.0 * 0.7978845608028654 * LOG2E
GC2 = GC1 * 0.044715
r4 = lambda k, b: f"{k}[{b}:{b+3}]"
r2 = lambda k, b: f"{k}[{b}:{b+1}]"
MF = "v_mfma_f32_16x16x32_bf16"


def gen_kp(a, opts):
    STAMP = int(opts.get("stamp", 0))
    LAST = int(opts.get("last", 6))
    kernel_head(a, "kp_kernel")
    st0 = Stamps(a, STAMP, base=0x40000)
    SK = int(opts.get("skip", 0))
    nst = [0]

    class _S:
        def __call__(self):
            if nst[0] == 0 or nst[0] > SK:
                if st0.n < 12:
                    st0()
            nst[0] += 1
        def dump(self, *x):
            st0.dump(*x)
    st = _S()
    vq = VQ(a)
    AF = lambda i, ks: 32 + (i * 5 + ks) * 4
    ACC = lambda i, t: 112 + (i * 5 + t) * 4
    BF = lambda buf, j, t: buf * 100 + (j * 5 + t) * 4
    HP, XP = 232, 242
    AM1, AR1 = 252, 253
    ONES = "v[28:31]"
    a("s_cmp_ge_u32 s2, 256\ns_cbranch_scc1 KP_END")
    st()
    a("s_load_dwordx2 s[4:5], s[0:1], 0")
    a("s_load_dwordx2 s[6:7], s[0:1], 64")
    a("s_load_dwordx2 s[8:9], s[0:1], 80")
    a("s_and_b32 s46, s2, 7\ns_lshr_b32 s47, s2, 3")
    a("s_lshr_b32 s40, s47, 3\ns_lshl_b32 s48, s46, 2\ns_add_u32 s40, s40, s48")
    a("s_and_b32 s41, s47, 7")
    a("s_lshr_b32 s43, s47, 4\ns_lshl_b32 s48, s46, 1\ns_add_u32 s43, s43, s48")
    a("s_and_b32 s44, s47, 15\ns_mul_i32 s45, s44, 27\ns_lshr_b32 s45, s45, 2")
    a("v_lshrrev_b32 v4, 6, v0\nv_and_b32 v1, 63, v0\nv_lshlrev_b32 v1, 4, v1")
    a("v_readfirstlane_b32 s42, v4")
    a("v_and_b32 v2, 15, v0\nv_bfe_u32 v3, v0, 4, 2")
    a("s_mul_i32 s48, s40, 81920\ns_mul_i32 s49, s42, 5120\ns_add_u32 s48, s48, s49\nv_add_u32 v4, s48, v1")
    a("s_mul_i32 s48, s42, 204800\ns_mul_i32 s49, s41, 5120\ns_add_u32 s48, s48, s49\nv_add_u32 v5, s48, v1")
    for i in range(4):
        a(f"s_add_u32 s48, s42, {i}\ns_and_b32 s48, s48, 3\ns_mul_i32 s{50+i}, s48, 20480")
        if i:
            a(f"s_mul_i32 s48, s48, 15360\ns_add_u32 s48, s48, {R_OFF + (i-1)*5120}\nv_add_u32 v{7+i}, s48, v1")
    a(f"s_mul_i32 s48, s42, 15360\ns_add_u32 s48, s48, {R_OFF}\nv_add_u32 v11, s48, v1")
    a("s_lshl_b32 s48, s40, 2\ns_add_u32 s48, s48, s42\ns_mul_i32 s48, s48, 20480\ns_mul_i32 s49, s41, 2560\ns_add_u32 s48, s48, s49")
    a("v_and_b32 v6, 1, v3\nv_lshrrev_b32 v7, 1, v3\nv_lshl_add_u32 v12, v6, 1, v7\nv_lshlrev_b32 v12, 8, v12")
    a("v_lshl_add_u32 v12, v2, 4, v12\nv_add_u32 v12, s48, v12")
    a("v_lshlrev_b32 v13, 8, v7\nv_lshl_add_u32 v13, v6, 3, v13\nv_lshl_add_u32 v13, v2, 4, v13\nv_add_u32 v13, s48, v13")
    a("s_lshl_b32 s48, s40, 12\ns_lshl_b32 s49, s42, 7\ns_add_u32 s48, s48, s49")
    a("v_lshlrev_b32 v14, 10, v3\nv_lshl_add_u32 v14, v2, 3, v14\nv_add_u32 v14, s48, v14")
    a("s_lshl_b32 s49, s41, 9\ns_add_u32 s48, s48, s49\nv_lshlrev_b32 v15, 3, v2\nv_add_u32 v15, s48, v15")
    for i in range(4):
        a(f"v_mov_b32 v{28+i}, 0x3f803f80")
    a(f"s_mov_b32 s56, {f32(GC1)}\ns_mov_b32 s57, {f32(GC1)}\ns_mov_b32 s58, {f32(GC2)}\ns_mov_b32 s59, {f32(GC2)}")
    a(f"s_mov_b32 s60, 1.0\ns_mov_b32 s61, 1.0\ns_mov_b32 s62, {f32(1/640)}\ns_mov_b32 s63, {f32(1e-5)}")
    a("s_waitcnt lgkmcnt(0)")
    srd(a, 12, 8, 9, 0, 0x1200000)
    srd(a, 20, 8, 9, WP_OFF, WP_BYTES)
    srd(a, 24, 4, 5, 0, ACT)
    srd(a, 16, 8, 9, HH_OFF, ACT)
    srd(a, 28, 6, 7, 0, ACT)

    def load_A(src, tag, sc="sc1"):
        for ks in range(5):
            for i in range(4):
                a(f"s_add_u32 s48, s{50+i}, {src + (4096 if ks == 4 else 0)}")
                a(f"buffer_load_dwordx4 {r4('v', AF(i, ks))}, v4, s[12:15], s48 offen offset:{(ks % 4)*1024} {sc}")
                vq.issue((tag, ks))

    def B_items(buf, wp, tag):
        items = []
        for j in range(5):
            for t in range(5):
                def f(j=j, t=t):
                    a(f"s_mov_b32 s49, {wp - WP_OFF + j*40960 + (4096 if t == 4 else 0)}")
                    a(f"buffer_load_dwordx4 {r4('a', BF(buf, j, t))}, v5, s[20:23], s49 offen offset:{(t % 4)*1024}")
                    vq.issue((tag, j))
                items.append(f)
        return items

    def gemm(buf, atag, btag, pend, pace=4):
        cnt = 0
        for ks in range(5):
            tags = [(atag, ks)] if atag else []
            if btag:
                tags.append((btag, ks))
            vq.wait(*tags)
            order = [(i, t) for i in ((1, 2, 3, 0)) for t in range(5)]
            for n, (i, t) in enumerate(order):
                c = "0" if ks == 0 else r4("v", ACC(i, t))
                a(f"{MF} {r4('v', ACC(i, t))}, {r4('a', BF(buf, ks, t))}, {r4('v', AF(i, ks))}, {c}")
                cnt += 1
                if pend and cnt % pace == 0:
                    pend.pop(0)()
                if ks == 4 and n >= 5:
                    i2, t2 = order[n - 5]
                    a(f"ds_write_b128 v{7+i2}, {r4('v', ACC(i2, t2))} offset:{1024*t2}")
        while pend:
            pend.pop(0)()

    def reduce_():
        a("s_waitcnt lgkmcnt(0)\ns_barrier")
        for s in range(3):
            for t in range(5):
                a(f"ds_read_b128 {r4('v', ACC(1+s, t))}, v11 offset:{s*5120 + t*1024}")
        for t in range(5):
            a(f"s_waitcnt lgkmcnt({4 - t})") if False else None
        a("s_waitcnt lgkmcnt(5)")
        for t in range(5):
            for h in (0, 2):
                a(f"v_pk_add_f32 {r2('v', ACC(0, t)+h)}, {r2('v', ACC(0, t)+h)}, {r2('v', ACC(1, t)+h)}")
                a(f"v_pk_add_f32 {r2('v', ACC(0, t)+h)}, {r2('v', ACC(0, t)+h)}, {r2('v', ACC(2, t)+h)}")
        a("s_waitcnt lgkmcnt(0)")
        for t in range(5):
            for h in (0, 2):
                a(f"v_pk_add_f32 {r2('v', ACC(0, t)+h)}, {r2('v', ACC(0, t)+h)}, {r2('v', ACC(3, t)+h)}")

    PK = 192

    def unpack(dst, src):
        a(f"v_lshlrev_b32 v{dst}, 16, v{src}\nv_and_b32 v{dst+1}, 0xffff0000, v{src}")

    def round_pack(b, o):
        a(f"v_cvt_pk_bf16_f32 v{o}, v{b}, v{b+1}\nv_cvt_pk_bf16_f32 v{o+1}, v{b+2}, v{b+3}")

    def store_tile(dst, keep=None, stats=None, tag="o"):
        if keep is not None:
            for i in range(10):
                a(f"v_accvgpr_write_b32 a{keep+i}, v{PK+i}")
        if stats is not None:
            a("v_mov_b32 v204, 0\nv_mov_b32 v205, 0\nv_mov_b32 v206, 0\nv_mov_b32 v207, 0")
            for i in range(10):
                unpack(202, PK + i)
                a("v_pk_add_f32 v[204:205], v[204:205], v[202:203]")
                a("v_pk_fma_f32 v[206:207], v[202:203], v[202:203], v[206:207]")
            a("v_add_f32 v204, v204, v205\nv_add_f32 v205, v206, v207")
        a(f"s_mov_b32 s48, {dst}")
        for p in range(2):
            o = PK + 4 * p
            a(f"v_permlane16_swap_b32 v{o}, v{o+2}\nv_permlane16_swap_b32 v{o+1}, v{o+3}")
            a(f"buffer_store_dwordx4 {r4('v', o)}, v12, s[12:15], s48 offen offset:{1024*p} sc1")
            vq.issue((tag, 0))
        a(f"buffer_store_dwordx2 {r2('v', PK+8)}, v13, s[12:15], s48 offen offset:2048 sc1")
        vq.issue((tag, 0))
        if stats is not None:
            for r in (204, 205):
                a(f"v_mov_b32 v206, v{r}\nv_permlane32_swap_b32 v{r}, v206\nv_add_f32 v{r}, v{r}, v206")
                a(f"v_mov_b32 v206, v{r}\nv_permlane16_swap_b32 v{r}, v206\nv_add_f32 v{r}, v{r}, v206")
            a(f"s_mov_b32 s48, {stats}")
            set_exec(a, 0xffff)
            a("buffer_store_dwordx2 v[204:205], v15, s[12:15], s48 offen sc1")
            vq.issue((tag, 0))
            set_exec(a, ALL)

    def publish(ph, idx_sgpr_expr, tag="o"):
        vq.wait((tag, 0))
        a("s_barrier")
        a(f"s_cmp_lg_u32 s42, 0\ns_cbranch_scc1 KP_PUB{ph}")
        a(idx_sgpr_expr)
        a(f"s_lshl_b32 s48, s48, 2\ns_add_u32 s48, s48, {FLAG_OFF + 1024*ph}\nv_mov_b32 v6, s48\nv_mov_b32 v7, 1\ns_mov_b64 exec, 1")
        a("buffer_store_dword v7, v6, s[12:15], 0 offen sc1")
        a("s_mov_b64 exec, -1")
        a.label(f"KP_PUB{ph}", flush=False)

    def poll(ph, addr_v):
        a("s_mov_b32 s54, 0")
        a.label(f"KP_POLL{ph}")
        a(f"buffer_load_dword v7, v{addr_v}, s[12:15], 0 offen sc1")
        a("s_waitcnt vmcnt(0)")
        a("v_cmp_eq_u32 vcc, 0, v7")
        a(f"s_cmp_eq_u64 vcc, 0\ns_cbranch_scc1 KP_GO{ph}")
        a(f"s_add_u32 s54, s54, 1\ns_cmp_lt_u32 s54, 0x80000\ns_cbranch_scc1 KP_POLL{ph}")
        a.label(f"KP_GO{ph}")
        vq.q = []

    def gelu4(b, tmp):
        for h in (0, 2):
            a(f"v_pk_mul_f32 {r2('v', tmp+h)}, {r2('v', b+h)}, {r2('v', b+h)}")
            a(f"v_pk_fma_f32 {r2('v', tmp+h)}, {r2('v', tmp+h)}, s[58:59], s[56:57]") if False else None
            a(f"v_pk_mul_f32 {r2('v', tmp+h)}, {r2('v', tmp+h)}, s[58:59]")
            a(f"v_pk_add_f32 {r2('v', tmp+h)}, {r2('v', tmp+h)}, s[56:57]")
            a(f"v_pk_mul_f32 {r2('v', tmp+h)}, {r2('v', tmp+h)}, {r2('v', b+h)}")
        for i in range(4):
            a(f"v_exp_f32 v{tmp+i}, v{tmp+i}")
        for h in (0, 2):
            a(f"v_pk_add_f32 {r2('v', tmp+h)}, {r2('v', tmp+h)}, s[60:61]")
        for i in range(4):
            a(f"v_rcp_f32 v{tmp+i}, v{tmp+i}")
        for h in (0, 2):
            a(f"v_pk_mul_f32 {r2('v', b+h)}, {r2('v', b+h)}, {r2('v', tmp+h)}")

    def row_stats(s0, s1, mean, var):
        a(f"v_pk_add_f32 {r2('v', s0)}, {r2('v', s0)}, {r2('v', s1)}")
        for r in (s0, s0 + 1):
            a(f"v_mov_b32 v{s1}, v{r}\nv_permlane32_swap_b32 v{r}, v{s1}\nv_add_f32 v{r}, v{r}, v{s1}")
            a(f"v_mov_b32 v{s1}, v{r}\nv_permlane16_swap_b32 v{r}, v{s1}\nv_add_f32 v{r}, v{r}, v{s1}")
        a(f"v_mul_f32 v{mean}, s62, v{s0}\nv_mul_f32 v{var}, s62, v{s0+1}")
        a(f"v_fma_f32 v{var}, -v{mean}, v{mean}, v{var}\nv_max_f32 v{var}, 0, v{var}")

    KVS = 192
    a(f"s_mul_i32 s48, s42, 13440\ns_add_u32 s48, s48, {KV_OFF}")
    for i in range(14):
        if i % 4 == 0 and i:
            a("s_add_u32 s48, s48, 4096")
        a(f"buffer_load_dwordx4 {r4('v', KVS+4*i)}, v1, s[12:15], s48 offen offset:{(i % 4)*1024}")
        vq.issue(("kv", 0))
    load_A(PQ_OFF, "pq", sc="")
    a("v_lshrrev_b32 v6, 4, v1\ns_lshl_b32 s48, s42, 6\nv_add_u32 v6, s48, v6")
    a("s_mul_i32 s48, s40, 81920\ns_mul_i32 s49, s41, 160\ns_add_u32 s49, s48, s49")
    for u in range(3):
        a(f"v_add_u32 v7, {256*u}, v6\nv_mul_u32_u24 v16, 6554, v7\nv_lshrrev_b32 v16, 16, v16")
        a("v_mul_u32_u24 v17, 10, v16\nv_sub_u32 v17, v7, v17\nv_mul_u32_u24 v16, 1280, v16\nv_lshl_add_u32 v16, v17, 4, v16")
        if u == 2:
            a("s_cmp_ge_u32 s42, 2\ns_cbranch_scc1 KP_X2")
        a(f"s_lshl_b32 s48, s42, 10\ns_add_u32 m0, s48, {4096*u}")
        a("buffer_load_dwordx4 v16, s[24:27], s49 offen lds")
        if u < 2:
            vq.issue(("x", 0))
    a.label("KP_X2", flush=False)
    for f in B_items(0, WPO, "wo"):
        f()
    st()
    KVF = 100
    for i in range(96):
        a(f"v_accvgpr_write_b32 a{KVF+i}, 0")
    a(f"s_mul_i32 s48, s42, 7168\ns_add_u32 s48, s48, {R_OFF}\nv_lshrrev_b32 v6, 1, v1\nv_add_u32 v6, s48, v6")
    vq.wait(("kv", 0))
    for i in range(14):
        b = KVS + 4 * i
        round_pack(b, b)
        a(f"ds_write_b64 v6, {r2('v', b)} offset:{512*i}")
    a("s_add_u32 s48, s48, 0")
    a("v_mul_u32_u24 v16, 40, v2\nv_lshl_add_u32 v16, v3, 4, v16\nv_add_u32 v16, s48, v16")
    a("v_and_b32 v6, 3, v2\nv_mul_u32_u24 v18, 800, v6\nv_lshl_add_u32 v18, v3, 4, v18\nv_add_u32 v18, s48, v18")
    a("v_lshrrev_b32 v6, 2, v2\nv_mul_u32_u24 v6, 40, v6\nv_add_u32 v17, v18, v6")
    for r in (16, 17, 18):
        a(f"v_subrev_u32 v{r}, 64, v{r}")
    a("s_waitcnt lgkmcnt(0)")
    frs = []
    for h in range(8):
        for ks in range(5):
            if 32 * ks < 20 * h + 20 and 32 * ks + 32 > 20 * h:
                frs.append(("m", h, ks))
    for u in range(2):
        for ks in ((0, 1, 2) if u == 0 else (2, 3, 4)):
            frs.append(("l", u, ks))
    for u in range(2):
        for ks in ((0, 1, 2) if u == 0 else (2, 3, 4)):
            frs.append(("d", u, ks))
    assert len(frs) == 24
    for fi, (kind, x, ks) in enumerate(frs):
        for q in range(2):
            if kind == "m":
                c = 4 * q + 32 * ks - 20 * x
                m = lanemask(lambda l: 0 <= 8 * (l >> 4) + c <= 16)
                off = 840 * x + 2 * c
                av = 16
            else:
                h0 = 4 * x
                m = lanemask(lambda l: (32 * ks + 8 * (l >> 4) + 4 * q) // 20 == h0 + (l & 3))
                off = (h0 * 21 + (16 if kind == "l" else 20)) * 40 + 2 * (32 * ks + 4 * q - 20 * h0)
                av = 17 if kind == "l" else 18
            if not m:
                continue
            set_exec(a, m)
            assert off + 64 >= 0
            a(f"ds_read_b64 {r2('a', KVF + 4*fi + 2*q)}, v{av} offset:{off + 64}")
    set_exec(a, ALL)
    a(f"s_mov_b32 s64, {f32(1e-6)}")
    OT = 112
    tidx = lambda kind, x: {"m": x, "l": 8 + x, "d": 10 + x}[kind]
    vq.wait(*[("pq", k) for k in range(5)])
    a("s_waitcnt lgkmcnt(0)")
    st()
    for i in range(4):
        seen = set()
        for fi, (kind, x, ks) in sorted(enumerate(frs), key=lambda e: 0 if e[1][0] == "d" else 1):
            ti = tidx(kind, x)
            c = r4("v", OT + 4 * ti) if ti in seen else "0"
            seen.add(ti)
            a(f"{MF} {r4('v', OT + 4*ti)}, {r4('a', KVF + 4*fi)}, {r4('v', AF(i, ks))}, {c}")
        for r in range(8):
            a(f"v_add_f32 v{OT+40+r}, s64, v{OT+40+r}")
        for r in range(8):
            a(f"v_rcp_f32 v{OT+40+r}, v{OT+40+r}")
        for h in range(8):
            b = OT + 4 * h
            rr = OT + 40 + (h & ~1)
            sel = "op_sel:[0,1] op_sel_hi:[1,1]" if h & 1 else "op_sel_hi:[1,0]"
            for p in (0, 2):
                a(f"v_pk_mul_f32 {r2('v', b+p)}, {r2('v', b+p)}, {r2('v', rr)} {sel}")
            round_pack(b, AF(i, h // 2) + 2 * (h & 1))
        for u in range(2):
            b = OT + 32 + 4 * u
            for p in (0, 2):
                a(f"v_pk_mul_f32 {r2('v', b+p)}, {r2('v', b+p)}, {r2('v', OT+40+4*u+p)}")
            round_pack(b, AF(i, 4) + 2 * u)
    st()
    gemm(0, None, "wo", B_items(1, WP1, "w1"))
    a("s_mul_i32 s48, s42, 2560\nv_mul_u32_u24 v6, 160, v2\nv_lshl_add_u32 v6, v3, 3, v6\nv_add_u32 v6, s48, v6")
    reduce_()
    st()
    for t in range(5):
        a(f"ds_read_b64 {r2('v', 208+2*t)}, v6 offset:{32*t}")
    a("s_waitcnt lgkmcnt(0)")
    for t in range(5):
        b = ACC(0, t)
        round_pack(b, 202)
        for p in range(2):
            unpack(b + 2 * p, 202 + p)
            unpack(204, 208 + 2 * t + p)
            a(f"v_pk_add_f32 {r2('v', b+2*p)}, {r2('v', b+2*p)}, v[204:205]")
        round_pack(b, PK + 2 * t)
    store_tile(H_OFF, keep=HP, stats=STH_OFF)
    publish(0, "s_lshl_b32 s48, s40, 3\ns_add_u32 s48, s48, s41")
    st()
    if LAST >= 3:
        CSV = 208
        vq.wait(*[("w1", k) for k in range(5)])
        for j in range(5):
            for t in range(5):
                c = "0" if j == 0 else r4("v", CSV + 4 * t)
                a(f"{MF} {r4('v', CSV+4*t)}, {r4('a', BF(1, j, t))}, {ONES}, {c}")
        a(f"s_mul_i32 s48, s42, 320\ns_add_u32 s48, s48, {R_OFF}\nv_lshl_add_u32 v6, v3, 4, s48\nv_lshlrev_b32 v7, 4, v3\nv_add_u32 v7, {R_OFF}, v7")
        set_exec(a, lanemask(lambda l: l % 16 == 0))
        for t in range(5):
            a(f"ds_write_b128 v6, {r4('v', CSV+4*t)} offset:{64*t}")
        set_exec(a, ALL)
        a("s_waitcnt lgkmcnt(0)\ns_barrier")
        for w in range(4):
            for t in range(5):
                a(f"ds_read_b128 {r4('v', 112 + 20*w + 4*t)}, v7 offset:{320*w + 64*t}")
        a(f"s_lshl_b32 s48, s40, 5\ns_add_u32 s48, s48, {FLAG_OFF}\nv_and_b32 v16, 7, v2\nv_lshl_add_u32 v16, v16, 2, s48")
        a("s_waitcnt lgkmcnt(0)")
        for t in range(5):
            for h in (0, 2):
                o = 4 * t + h
                a(f"v_pk_add_f32 {r2('v', 112+o)}, {r2('v', 112+o)}, {r2('v', 132+o)}")
                a(f"v_pk_add_f32 {r2('v', 152+o)}, {r2('v', 152+o)}, {r2('v', 172+o)}")
                a(f"v_pk_add_f32 {r2('v', CSV+o)}, {r2('v', 112+o)}, {r2('v', 152+o)}")
        a("s_barrier")
        poll(0, 16)
        st()
        load_A(H_OFF, "h")
        a(f"s_mov_b32 s48, {STH_OFF}")
        a("buffer_load_dwordx2 v[228:229], v14, s[12:15], s48 offen sc1\nbuffer_load_dwordx2 v[230:231], v14, s[12:15], s48 offen offset:512 sc1")
        vq.issue(("sh", 0)); vq.issue(("sh", 0))
        gemm(1, "h", None, B_items(0, WP2, "w2"))
        vq.wait(("sh", 0))
        row_stats(228, 230, 232, 233)
        a("v_add_f32 v234, s63, v233\nv_rsq_f32 v234, v234")
        a("v_mul_f32 v235, v234, v234\nv_fma_f32 v235, v233, v235, s63\nv_rsq_f32 v235, v235")
        a(f"v_accvgpr_write_b32 a{AM1}, v232\nv_accvgpr_write_b32 a{AR1}, v234")
        a("v_mul_f32 v235, v235, v234\nv_mul_f32 v234, v232, v235\nv_sub_f32 v234, 0, v234")
        reduce_()
        st()
        for t in range(5):
            b = ACC(0, t)
            for h in (0, 2):
                a(f"v_pk_mul_f32 {r2('v', 202)}, {r2('v', CSV+4*t+h)}, v[234:235] op_sel_hi:[1,0]")
                a(f"v_pk_fma_f32 {r2('v', b+h)}, {r2('v', b+h)}, v[234:235], {r2('v', 202)} op_sel:[0,1,0] op_sel_hi:[1,1,1]")
            gelu4(b, 204)
            round_pack(b, PK + 2 * t)
        store_tile(HH_OFF)
        publish(1, "s_lshl_b32 s48, s40, 3\ns_add_u32 s48, s48, s41")
        st()
    if LAST >= 4:
        a("s_and_b32 s48, s42, 1\ns_cmp_eq_u32 s48, 0\ns_cselect_b32 s48, -1, 1\ns_add_i32 s49, s40, s48")
        a("s_max_i32 s49, s49, 0\ns_min_i32 s49, s49, 31")
        a("s_sub_i32 s49, s49, s40\ns_lshl_b32 s49, s49, 5")
        a(f"s_lshl_b32 s55, s40, 5\ns_lshl_b32 s64, s42, 3\ns_add_u32 s55, s55, s64\ns_add_u32 s55, s55, {FLAG_OFF + 1024}")
        a("v_and_b32 v16, 1, v2\nv_lshl_add_u32 v16, v16, 2, s55\nv_bfe_u32 v6, v2, 1, 1\nv_mul_lo_u32 v6, v6, s49\nv_add_u32 v16, v16, v6")
        a("s_lshr_b32 s49, s42, 1\ns_add_u32 s49, s49, 1\ns_mul_i32 s49, s49, s48")
        a("s_mul_i32 s64, s42, 5120")
        for i in range(4):
            a(f"s_add_u32 s55, s42, {i}\ns_and_b32 s55, s55, 3\ns_lshl_b32 s55, s55, 4\ns_lshl_b32 s65, s40, 6\ns_add_u32 s55, s55, s65\ns_add_i32 s55, s55, s49")
            a("v_add_u32 v6, s55, v2\nv_ashrrev_i32 v7, 4, v6\nv_mul_lo_u32 v7, v7, s66" if False else "v_add_u32 v6, s55, v2\nv_ashrrev_i32 v7, 4, v6")
            a("s_mov_b32 s65, 20480\nv_mul_lo_u32 v7, v7, s65\nv_and_b32 v6, 15, v6\nv_lshl_add_u32 v7, v6, 4, v7")
            a(f"v_lshl_add_u32 v7, v3, 8, v7\nv_add_u32 v{20+i}, s64, v7")
        a("s_mov_b32 s65, 4096")
        poll(1, 16)
        st()
        for ks in range(5):
            for i in range(4):
                a(f"buffer_load_dwordx4 {r4('v', AF(i, ks))}, v{20+i}, s[16:19], {'s65' if ks == 4 else '0'} offen offset:{(ks % 4)*1024} sc1")
                vq.issue(("hh", ks))
        a(f"s_lshl_b32 s48, s45, 10\ns_mul_i32 s49, s42, 110592\ns_add_u32 s66, s48, s49\ns_add_u32 s66, s66, {WP3 - WP_OFF}")
        a("s_mul_i32 s67, s42, 7168")

        def w3_items(us):
            items = []
            for u in us:
                for t in range(7):
                    def f(u=u, t=t):
                        a(f"s_add_u32 m0, s67, {u*28672 + t*1024}\ns_add_u32 s49, s66, {u*442368 + t*1024}")
                        a("buffer_load_dwordx4 v1, s[20:23], s49 offen lds")
                        vq.issue(("w3", u))
                    items.append(f)
            return items
        gemm(0, "hh", None, w3_items(range(3)))
        a(f"v_accvgpr_read_b32 v234, a{AM1}\nv_accvgpr_read_b32 v235, a{AR1}")
        a("v_mul_f32 v234, v234, v235\nv_sub_f32 v234, 0, v234")
        reduce_()
        st()
        for t in range(5):
            b = ACC(0, t)
            round_pack(b, 202)
            for p in range(2):
                unpack(b + 2 * p, 202 + p)
                a(f"v_accvgpr_read_b32 v206, a{HP + 2*t + p}")
                unpack(204, 206)
                a("v_pk_fma_f32 v[204:205], v[204:205], v[234:235], v[234:235] op_sel:[0,1,0] op_sel_hi:[1,1,0]")
                a("v_cvt_pk_bf16_f32 v206, v204, v205")
                unpack(204, 206)
                a(f"v_pk_add_f32 {r2('v', b+2*p)}, {r2('v', b+2*p)}, v[204:205]")
            round_pack(b, PK + 2 * t)
        store_tile(X1_OFF, keep=XP, stats=STX_OFF)
        a("s_barrier")
        for f in w3_items(range(3, 5)):
            f()
        publish(2, "s_lshl_b32 s48, s40, 3\ns_add_u32 s48, s48, s41")
        st()
    if LAST >= 5:
        AF5 = lambda mt, ks: 32 + (ks * 2 + mt) * 4
        AC5 = lambda mt, t: 192 + (mt * 7 + t) * 4
        BF5 = lambda buf, t: 160 + (buf * 7 + t) * 4
        B6 = lambda j, t: (j * 5 + t) * 4
        CS_OFF = 143360
        vq.wait(*[("w3", u) for u in range(5)])
        a("s_barrier")
        a("s_lshl_b32 s48, s42, 11\ns_add_u32 s49, s48, 1024\ns_min_u32 s49, s49, 6144\nv_add_u32 v6, s48, v1\nv_add_u32 v7, s49, v1")
        a("v_add_u32 v16, 57344, v6\nv_add_u32 v17, 57344, v7\nv_add_u32 v18, 57344, v16\nv_add_u32 v19, 57344, v17")
        for ks in range(20):
            for i in range(2):
                a(f"ds_read_b128 {r4('v', AF5(i, ks))}, v{(6, 16, 18)[ks // 8] + i} offset:{(ks % 8)*7168}")
        for ks in range(20):
            if ks % 4 == 0:
                a(f"s_waitcnt lgkmcnt({max(0, min(15, 40 - 2*ks - 8))})")
            for i in range(2):
                c = "0" if ks == 0 else r4("v", 192 + 4 * i)
                a(f"{MF} {r4('v', 192+4*i)}, {r4('v', AF5(i, ks))}, {ONES}, {c}")
        a(f"s_lshr_b32 s48, s48, 4\ns_lshr_b32 s49, s49, 4\ns_add_u32 s48, s48, {CS_OFF}\ns_add_u32 s49, s49, {CS_OFF}")
        a("v_lshl_add_u32 v6, v3, 4, s48\nv_lshl_add_u32 v7, v3, 4, s49")
        set_exec(a, lanemask(lambda l: l % 16 == 0))
        a("ds_write_b128 v6, v[192:195]\nds_write_b128 v7, v[196:199]")
        set_exec(a, ALL)
        a(f"s_lshl_b32 s48, s43, 6\ns_add_u32 s48, s48, {FLAG_OFF + 2048}\nv_lshl_add_u32 v16, v2, 2, s48")
        a(f"s_lshl_b32 s48, s43, 3\ns_lshl_b32 s49, s42, 1\ns_add_u32 s55, s48, s49\ns_mul_i32 s48, s55, 20480\ns_add_u32 s48, s48, {X1_OFF}\nv_add_u32 v17, s48, v1")
        a("s_lshl_b32 s48, s43, 1\ns_lshr_b32 s49, s42, 1\ns_add_u32 s48, s48, s49\ns_lshl_b32 s48, s48, 12\ns_and_b32 s49, s42, 1\ns_lshl_b32 s49, s49, 8")
        a(f"s_add_u32 s48, s48, s49\ns_add_u32 s48, s48, {STX_OFF}\nv_lshlrev_b32 v18, 10, v3\nv_lshl_add_u32 v18, v2, 3, v18\nv_add_u32 v18, s48, v18")
        a("v_mov_b32 v19, v1\nv_add_u32 v20, 57344, v1\nv_add_u32 v21, 114688, v1")
        a(f"s_mul_i32 s48, s55, 55296\ns_lshl_b32 s49, s45, 9\ns_add_u32 s48, s48, s49\ns_add_u32 s48, s48, {G_OFF}")
        a("v_and_b32 v6, 1, v3\nv_lshrrev_b32 v7, 1, v3\nv_lshl_add_u32 v22, v6, 1, v7\nv_lshlrev_b32 v22, 8, v22")
        a("v_lshl_add_u32 v22, v2, 4, v22\nv_add_u32 v22, s48, v22")
        a("v_lshlrev_b32 v23, 8, v7\nv_lshl_add_u32 v23, v6, 3, v23\nv_lshl_add_u32 v23, v2, 4, v23\nv_add_u32 v23, s48, v23")
        a("s_mul_i32 s68, s42, 14\ns_sub_u32 s48, s42, 2\ns_max_i32 s48, s48, 0\ns_sub_u32 s68, s68, s48")
        a(f"s_mul_i32 s48, s68, 40960\ns_mul_i32 s49, s41, 5120\ns_add_u32 s48, s48, s49\ns_add_u32 s48, s48, {WP4 - WP_OFF}\nv_add_u32 v24, s48, v1")
        a("s_cmp_lt_u32 s42, 2\ns_cselect_b32 s69, 0, 0x7f000000")

        def w4_items(js):
            items = []
            for j in js:
                for t in range(5):
                    def f(j=j, t=t):
                        off = j * 40960 + (4096 if t == 4 else 0)
                        a(f"s_add_u32 s49, s69, {off}" if j == 13 else f"s_mov_b32 s49, {off}")
                        a(f"buffer_load_dwordx4 {r4('a', B6(j % 11, t))}, v24, s[20:23], s49 offen offset:{(t % 4)*1024}")
                        vq.issue(("w4", j))
                    items.append(f)
            return items

        def reads5(ks):
            return [f"ds_read_b128 {r4('a', BF5(ks % 2, t))}, v{19 + ks // 8} offset:{(ks % 8)*7168 + t*1024}" for t in range(7)]
        a("s_waitcnt lgkmcnt(0)\ns_barrier")
        for r in reads5(0):
            a(r)
        poll(2, 16)
        st()

        def a5_item(ks, mt):
            def f():
                a(f"s_mov_b32 s48, {mt*20480 + (ks // 4)*4096}")
                a(f"buffer_load_dwordx4 {r4('v', AF5(mt, ks))}, v17, s[12:15], s48 offen offset:{(ks % 4)*1024} sc1")
                vq.issue(("x1", ks))
            return f
        UP5 = 10
        for ks in range(UP5):
            for mt in range(2):
                a5_item(ks, mt)()
        for mt in range(2):
            for i in range(2):
                a(f"buffer_load_dwordx2 {r2('v', 248 + 4*mt + 2*i)}, v18, s[12:15], 0 offen offset:{128*mt + 512*i} sc1")
                vq.issue(("sx", 0))
        pend = [a5_item(ks, mt) for ks in range(UP5, 20) for mt in range(2)] + w4_items(range(8))
        cnt = 0
        for ks in range(20):
            vq.wait(("x1", ks))
            a("s_waitcnt lgkmcnt(0)")
            nr = reads5(ks + 1) if ks + 1 < 20 else []
            n = 0
            for t in range(7):
                for mt in range(2):
                    c = "0" if ks == 0 else r4("v", AC5(mt, t))
                    a(f"{MF} {r4('v', AC5(mt, t))}, {r4('a', BF5(ks % 2, t))}, {r4('v', AF5(mt, ks))}, {c}")
                    if n < len(nr) and mt == 0:
                        pass
                    if mt == 1 and t < len(nr):
                        a(nr[t]) if t < 6 else None
                    if mt == 0 and t == 0 and nr:
                        a(nr[6])
                    cnt += 1
                    if pend and cnt % 4 == 0:
                        pend.pop(0)()
        while pend:
            pend.pop(0)()
        st()
        a(f"v_lshlrev_b32 v6, 4, v3\nv_add_u32 v6, {CS_OFF}, v6")
        for t in range(7):
            a(f"ds_read_b128 {r4('v', 32 + 4*t)}, v6 offset:{64*t}")
        for mt in range(2):
            s0 = 248 + 4 * mt
            row_stats(s0, s0 + 2, 60 + 2 * mt, 61 + 2 * mt)
            a(f"v_add_f32 v{61+2*mt}, s63, v{61+2*mt}\nv_rsq_f32 v{61+2*mt}, v{61+2*mt}")
            a(f"v_mul_f32 v{60+2*mt}, v{60+2*mt}, v{61+2*mt}\nv_sub_f32 v{60+2*mt}, 0, v{60+2*mt}")
        a("s_waitcnt lgkmcnt(0)\ns_mov_b32 s48, 55296")
        for f in w4_items(range(8, 11)):
            f()
        for mt in range(2):
            fr = r2('v', 60 + 2 * mt)
            so = "s48" if mt else "0"
            for t in range(7):
                b = AC5(mt, t)
                for h in (0, 2):
                    a(f"v_pk_mul_f32 v[64:65], {r2('v', 32+4*t+h)}, {fr} op_sel_hi:[1,0]")
                    a(f"v_pk_fma_f32 {r2('v', b+h)}, {r2('v', b+h)}, {fr}, v[64:65] op_sel:[0,1,0] op_sel_hi:[1,1,1]")
                gelu4(b, 68)
                o = 72 + 16 * mt + 2 * t
                round_pack(b, o)
                if t & 1:
                    o -= 2
                    a(f"v_permlane16_swap_b32 v{o}, v{o+2}\nv_permlane16_swap_b32 v{o+1}, v{o+3}")
                    a(f"buffer_store_dwordx4 {r4('v', o)}, v22, s[12:15], {so} offen offset:{512*(t-1)} sc1")
                    vq.issue(("o", 0))
                if t == 6:
                    a(f"buffer_store_dwordx2 {r2('v', o)}, v23, s[12:15], {so} offen offset:3072 sc1")
                    vq.issue(("o", 0))
        publish(3, "s_lshl_b32 s48, s43, 4\ns_add_u32 s48, s48, s44")
        st()
    if LAST >= 6:
        A6 = lambda j, i: (32 + ((j % 5) * 4 + i) * 4) if (j % 7) < 5 else (192 + (((j % 7) - 5) * 4 + i) * 4)
        a(f"s_lshr_b32 s48, s40, 1\ns_lshl_b32 s48, s48, 6\ns_add_u32 s48, s48, {FLAG_OFF + 3072}\nv_lshl_add_u32 v16, v2, 2, s48")
        a(f"s_mul_i32 s48, s40, 221184\ns_lshl_b32 s49, s68, 10\ns_add_u32 s48, s48, s49\ns_add_u32 s48, s48, {G_OFF}\nv_add_u32 v17, s48, v1")
        for i in range(4):
            a(f"s_add_u32 s48, s42, {i}\ns_and_b32 s48, s48, 3\ns_mul_i32 s{50+i}, s48, 55296")
        a("s_lshl_b32 s48, s40, 6\ns_lshl_b32 s49, s42, 4\ns_add_u32 s48, s48, s49\nv_add_u32 v6, s48, v2\nv_mul_u32_u24 v6, 1280, v6")
        a("s_mul_i32 s48, s41, 160\nv_add_u32 v6, s48, v6\nv_and_b32 v7, 1, v3\nv_lshrrev_b32 v18, 1, v3")
        a("v_lshl_add_u32 v19, v7, 1, v18\nv_lshl_add_u32 v19, v19, 4, v6")
        a("v_lshlrev_b32 v18, 4, v18\nv_lshl_add_u32 v18, v7, 3, v18\nv_add_u32 v18, v18, v6")

        def A6reg(j, i):
            s = j % 7
            return 32 + (s * 4 + i) * 4 if s < 5 else 192 + ((s - 5) * 4 + i) * 4

        def a6_item(j, i):
            def f():
                a(f"s_add_u32 s48, s{50+i}, {(j // 4)*4096}")
                if j == 13:
                    a("s_add_u32 s48, s48, s69")
                a(f"buffer_load_dwordx4 {r4('v', A6reg(j, i))}, v17, s[12:15], s48 offen offset:{(j % 4)*1024} sc1")
                vq.issue(("g", j))
            return f
        poll(3, 16)
        st()
        for j in range(7):
            for i in range(4):
                a6_item(j, i)()
        pend = []
        for j in range(14):
            vq.wait(("g", j), ("w4", j))
            order = [(i, t) for i in ((1, 2, 3, 0)) for t in range(5)]
            for n, (i, t) in enumerate(order):
                c = "0" if j == 0 else r4("v", ACC(i, t))
                a(f"{MF} {r4('v', ACC(i, t))}, {r4('a', B6(j % 11, t))}, {r4('v', A6reg(j, i))}, {c}")
                if pend and n % 2 == 1:
                    pend.pop(0)()
                if j == 13 and n >= 5:
                    i2, t2 = order[n - 5]
                    a(f"ds_write_b128 v{7+i2}, {r4('v', ACC(i2, t2))} offset:{1024*t2}")
            while pend:
                pend.pop(0)()
            if j + 7 < 14:
                pend += [a6_item(j + 7, i) for i in range(4)]
            if j + 11 < 14:
                pend += w4_items([j + 11])
        reduce_()
        st()
        for t in range(5):
            b = ACC(0, t)
            round_pack(b, 202)
            for p in range(2):
                unpack(b + 2 * p, 202 + p)
                a(f"v_accvgpr_read_b32 v206, a{XP + 2*t + p}\nv_accvgpr_read_b32 v207, a{HP + 2*t + p}")
                unpack(204, 206)
                a(f"v_pk_add_f32 {r2('v', b+2*p)}, {r2('v', b+2*p)}, v[204:205]")
                a(f"v_cvt_pk_bf16_f32 v206, v{b+2*p}, v{b+2*p+1}")
                unpack(b + 2 * p, 206)
                unpack(204, 207)
                a(f"v_pk_add_f32 {r2('v', b+2*p)}, {r2('v', b+2*p)}, v[204:205]")
            round_pack(b, PK + 2 * t)
        for p in range(2):
            o = PK + 4 * p
            a(f"v_permlane16_swap_b32 v{o}, v{o+2}\nv_permlane16_swap_b32 v{o+1}, v{o+3}")
            a(f"buffer_store_dwordx4 {r4('v', o)}, v19, s[28:31], 0 offen offset:{64*p}")
        a(f"buffer_store_dwordx2 {r2('v', PK+8)}, v18, s[28:31], 0 offen offset:128")
        st()
    st.dump(8, 9, 42)
    a.label("KP_END", flush=False)
    a("s_endpgm")
    return kernel_desc("kp_kernel", 512, 256)
```
